```python
import torch

def _softmax(x, axis=-1):
    return torch.softmax(x, dim=axis)
def _gelu(x):
    return torch.nn.functional.gelu(x, approximate="tanh")
def _silu(x):
    return torch.nn.functional.silu(x)
def _sigmoid(x):
    return torch.sigmoid(x)
def _layernorm(x, axis=-1, eps=1e-5):
    m = x.mean(dim=axis, keepdim=True)
    v = x.var(dim=axis, keepdim=True, unbiased=False)
    return (x - m) / torch.sqrt(v + eps)
def _scatter_add(tgt, idx, src, axis=0):
    return tgt.clone().index_add_(axis, idx, src)
def _segment_sum(src, seg, n):
    out = torch.zeros((n,) + src.shape[1:], dtype=src.dtype)
    return out.index_add_(0, seg, src)
def _pad(x, pw):
    flat = tuple(v for pair in reversed(pw) for v in pair)
    return torch.nn.functional.pad(x, flat)

kernel_name = 'standalone__paged_block_table_kv_pagedattention__sampling'

def setup_inputs():

    _w = (lambda a: (lambda t: t.to(torch.bfloat16) if t.is_floating_point() else t)(torch.as_tensor(a)))
    B, Hq, Hkv, Sq, Skv, D = 32, 32, 8, 8, 2048, 128
    bs = 16
    nbps = max(1, Skv // bs)
    num_phys = B * nbps + 4
    bt = torch.randperm(num_phys)[: B * nbps].reshape(B, nbps).to(torch.int64)
    cl = (nbps * bs - (torch.arange(1, B + 1, dtype=torch.int64) * 2654435761) % max(1, nbps * bs // 2)).to(torch.int64)
    return {
        "q": _w((lambda *s: torch.randn(*s, dtype=torch.bfloat16) * 0.8)(B, Hq, Sq, D)),
        "k_cache": _w((lambda *s: torch.randn(*s, dtype=torch.bfloat16) * 0.8)(num_phys, bs, Hkv, D)),
        "v_cache": _w((lambda *s: torch.randn(*s, dtype=torch.bfloat16) * 0.05)(num_phys, bs, Hkv, D)),
        "block_table": _w(bt),
        "context_lens": _w(cl),
    }

def reference(q, k_cache, v_cache, block_table, context_lens):
    B, Hq, Sq, D = q.shape
    bs = k_cache.shape[1]
    Hkv = k_cache.shape[2]
    nbps = block_table.shape[1]
    Skv = nbps * bs
    bt = block_table.reshape(-1)
    k = (lambda x, *d: x.permute(*d))(k_cache[bt].reshape(B, Skv, Hkv, D), 0, 2, 1, 3)
    v = (lambda x, *d: x.permute(*d))(v_cache[bt].reshape(B, Skv, Hkv, D), 0, 2, 1, 3)
    g = Hq // Hkv
    qg = q.reshape(B, Hkv, g, Sq, D)
    scores = torch.einsum("bhgqd,bhkd->bhgqk", qg, k) * (D ** -0.5)
    pos = torch.arange(Skv)
    msk = pos[None, :] < context_lens[:, None]
    scores = torch.where(msk[:, None, None, None, :], scores, -1e9)
    p = _softmax(scores, axis=-1)
    out = torch.einsum("bhgqk,bhkd->bhgqd", p, v)
    return out.reshape(B, Hq, Sq, D)
```

```python
import sys, struct, math
NAME = "standalone__paged_block_table_kv_pagedattention__sampling"
KBYTES = 4100*32768
def f2u(x): return struct.unpack("<I", struct.pack("<f", x))[0]

HEADER = open("cdna_kernels/%s.s.ref" % NAME).read().split("; Override")[0]

def gen(flags="nt", nlo=16, nhi=32, alpha=23.0, fixedN=None, stamps=False, qflags="", oflags="", mapmode="bh", half=False, bias=0.0):
    o = []
    A = o.append
    A(HEADER.rstrip())
    A("; @launch grid=(256,1,1) block=(320,1,1) lds=131072")
    A('.amdgcn_target "amdgcn-amd-amdhsa--gfx950"')
    A(".text")
    A(f".globl {NAME}_kernel")
    A(".p2align 8")
    A(f".type {NAME}_kernel,@function")
    A(f"{NAME}_kernel:")
    A("s_cmp_ge_u32 s2, 256")
    A("s_cbranch_scc1 L_end")
    A("s_load_dwordx8 s[4:11], s[0:1], 0      ; q k v bt")
    A("s_load_dwordx4 s[12:15], s[0:1], 32")
    if stamps:
        A("s_memrealtime s[60:61]")
        A("s_load_dwordx2 s[58:59], s[0:1], 56")
    if mapmode == "bh":
        A("s_lshr_b32 s32, s2, 3                  ; b")
        A("s_and_b32 s33, s2, 7                   ; h")
    else:
        A("s_and_b32 s32, s2, 31")
        A("s_lshr_b32 s33, s2, 5")
    A("v_lshrrev_b32 v1, 6, v0")
    A("v_and_b32 v0, 63, v0                   ; lane")
    A("v_readfirstlane_b32 s34, v1            ; wave")
    A("s_nop 1")
    A("s_cmp_lg_u32 s34, 0")
    A("s_cbranch_scc1 L_consumer")

    A("s_setprio 3")
    A("s_lshl_b32 s35, s32, 9")
    A("v_lshlrev_b32 v1, 3, v0")
    A("v_add_u32 v1, s35, v1")
    A("v_and_b32 v6, 31, v0")
    A("v_lshlrev_b32 v6, 2, v6")
    A("s_waitcnt lgkmcnt(0)")
    A("global_load_dwordx2 v[2:3], v1, s[10:11]")
    A("global_load_dword v7, v6, s[12:13]")
    if stamps: A("s_memrealtime s[62:63]")
    for base, p in ((16, 6), (20, 6), (24, 8), (28, 8)):
        A(f"s_mov_b32 s{base}, s{p}"); A(f"s_mov_b32 s{base+1}, s{p+1}")
        A(f"s_mov_b32 s{base+2}, {KBYTES}"); A(f"s_mov_b32 s{base+3}, 0x20000")
    A("v_lshrrev_b32 v4, 4, v0")
    A("v_and_b32 v5, 15, v0")
    A("v_lshlrev_b32 v16, 2, v4")
    A("v_xor_b32 v16, v5, v16")
    A("v_lshlrev_b32 v16, 4, v16")
    for j in range(4):
        A(f"v_add_u32 v17, {4*j}, v4")
        A("v_xor_b32 v18, v5, v17")
        A("v_lshlrev_b32 v18, 4, v18")
        A("v_lshlrev_b32 v17, 11, v17")
        if j: A(f"v_subrev_u32 v17, {1024*j}, v17")
        A(f"v_add_u32 v{8+j}, v17, v18")
        A(f"v_add_u32 v{12+j}, v17, v16")
    A("v_mov_b32 v19, 2048")
    A("s_lshl_b32 s36, s33, 8                 ; h*256")
    A("s_waitcnt vmcnt(0)")
    if stamps: A("s_memrealtime s[64:65]")
    A("v_cmp_lt_i32 vcc, 0, v7")
    A("v_min_i32 v7, v7, v19")
    A("v_lshlrev_b32 v2, 15, v2")
    A("v_cndmask_b32 v7, v19, v7, vcc")
    A("v_lshlrev_b32 v3, 15, v3")
    A("v_readlane_b32 s37, v7, s32            ; cl_eff")
    A("v_add_u32_dpp v20, v7, v7 row_shr:1 row_mask:0xf bank_mask:0xf bound_ctrl:0")
    A("v_lshlrev_b32 v21, 5, v0")
    A("v_sub_u32 v21, s37, v21")
    A("v_add_u32_dpp v20, v20, v20 row_shr:2 row_mask:0xf bank_mask:0xf bound_ctrl:0")
    A("v_med3_i32 v4, v21, 0, 16")
    A("v_subrev_u32 v21, 16, v21")
    A("v_add_u32_dpp v20, v20, v20 row_shr:4 row_mask:0xf bank_mask:0xf bound_ctrl:0")
    A("v_med3_i32 v5, v21, 0, 16")
    A("v_lshl_add_u32 v4, v4, 11, v2")
    A("v_add_u32_dpp v20, v20, v20 row_shr:8 row_mask:0xf bank_mask:0xf bound_ctrl:0")
    A("v_lshl_add_u32 v5, v5, 11, v3")
    A("v_min_u32 v4, s18, v4")
    A("v_add_u32_dpp v20, v20, v20 row_bcast:15 row_mask:0xa bank_mask:0xf")
    A("v_min_u32 v5, s18, v5")
    A("v_add_u32 v2, s36, v2")
    A("v_add_u32 v3, s36, v3")
    A("v_cvt_f32_u32 v20, v20")
    A("v_cvt_f32_u32 v22, s37")
    A("v_rcp_f32 v20, v20")
    mult = 2 if half else 1
    A(f"v_mul_f32 v22, {hex(f2u(alpha*32*mult))}, v22")
    A(f"v_mov_b32 v23, {hex(f2u(0.5 + bias*mult))}")
    A("v_fma_f32 v20, v20, v22, v23")
    A("v_cvt_u32_f32 v20, v20")
    A("s_add_u32 s38, s37, 31")
    A("s_lshr_b32 s38, s38, 5                 ; nt")
    A("v_readlane_b32 s39, v20, 31            ; N")
    A("s_sub_u32 s40, s38, 1")
    A("s_and_b32 s41, s40, 3")
    A("s_add_u32 s41, s41, 1")
    A("s_mov_b32 s42, 0")
    A("s_mov_b32 s44, s41                     ; pubinc")
    A("s_mov_b32 s45, s41")
    A("s_mov_b32 s46, 0")
    A("s_lshl_b32 s47, s38, 1")
    if fixedN is not None:
        Ns = [fixedN*mult]
    else:
        Ns = list(range(nlo*mult, nhi*mult+1))
    def dispatch(lst, top=False):
        if len(lst) == 1:
            A(f"s_branch L_ld{lst[0]}")
            return
        mid = len(lst)//2
        lab = f"L_disp{lst[mid]}_{lst[-1]}"
        A(f"s_cmp_ge_u32 s39, {lst[mid]}")
        if len(lst) - mid == 1:
            A(f"s_cbranch_scc1 L_ld{lst[mid]}")
            dispatch(lst[:mid])
        else:
            A(f"s_cbranch_scc1 {lab}")
            dispatch(lst[:mid])
            A(f"{lab}:")
            dispatch(lst[mid:])
    dispatch(Ns)
    for NN in Ns:
        if half:
            Nw = [ (NN//2) + (1 if (NN & 1) and (j & 1) else 0) for j in range(8)]
        else:
            Nw = [NN]*8
        x = 0
        while x < Nw[x % 8] - 1: x += 1
        q, p = x // 8, x % 8
        A(f"L_ld{NN}:")
        A(f"s_add_u32 s43, s41, {q}")
        A(f"L_ld{NN}_round:")
        for which, sa, sb, vo, lo in (("k", 16, 20, 8, 0), ("v", 24, 28, 12, 8192)):
            A("s_mov_b32 s48, s40")
            A(f"s_add_u32 s49, s46, {lo}")
            A("s_mov_b32 s50, s45")
            A(f"L_ld{NN}_{which}:")
            A("v_readlane_b32 s52, v2, s48")
            A(f"v_readlane_b32 s{sa+2}, v4, s48")
            A("v_readlane_b32 s53, v3, s48")
            A(f"v_readlane_b32 s{sb+2}, v5, s48")
            A("s_mov_b32 m0, s49")
            A("s_sub_u32 s48, s48, 1")
            A("s_add_u32 s49, s49, 32768")
            A("s_nop 1")
            for j in range(8):
                if j == 4: A("s_add_u32 m0, m0, 4096")
                A(f"s_waitcnt vmcnt({Nw[j]-1})")
                if j == p:
                    A("s_cmp_lg_u32 s42, s43")
                    A(f"s_cbranch_scc1 L_ld{NN}_{which}_np")
                    A("s_barrier")
                    A("s_add_u32 s43, s43, s44")
                    A("s_mov_b32 s44, 4")
                    A(f"L_ld{NN}_{which}_np:")
                srd = sa if j < 4 else sb
                A(f"buffer_load_dwordx4 v{vo + (j&3)}, s[{srd}:{srd+3}], s{52 + j//4} offen offset:{1024*(j&3)} {flags} lds")
            A("s_add_u32 s42, s42, 1")
            A("s_sub_u32 s50, s50, 1")
            A("s_cmp_lg_u32 s50, 0")
            A(f"s_cbranch_scc1 L_ld{NN}_{which}")
        A("s_sub_u32 s40, s40, s45")
        A("s_mov_b32 s45, 4")
        A("s_xor_b32 s46, s46, 16384")
        A("s_cmp_lt_u32 s42, s47")
        A(f"s_cbranch_scc1 L_ld{NN}_round")
        A(f"s_add_u32 s51, s47, {q}")
        A("s_sub_u32 s51, s51, s43                ; rem")
        A(f"s_branch L_drain{q}")
    for c in range(7, -1, -1):
        A(f"L_drain{c}:")
        A(f"s_cmp_lg_u32 s51, {c}")
        A(f"s_cbranch_scc1 L_drain{c}_n")
        A(f"s_waitcnt vmcnt({8*c})")
        A("s_barrier")
        A("s_sub_u32 s51, s51, s44")
        A("s_mov_b32 s44, 4")
        A(f"L_drain{c}_n:")
    if stamps:
        A("s_branch L_stamp")
    A("s_endpgm")

    O0, S0, Q0, F0, P0, KA, VA = 64, 48, 128, 160, 40, 16, 24
    vM, vL = 28, 29
    A("L_consumer:")
    A("s_sub_u32 s34, s34, 1                  ; cw")
    A("v_and_b32 v1, 31, v0")
    A("v_lshrrev_b32 v2, 5, v0                ; hf")
    A("s_lshl_b32 s35, s32, 16")
    A("s_lshl_b32 s36, s33, 13")
    A("s_add_u32 s35, s35, s36")
    A("v_lshlrev_b32 v3, 8, v1")
    A("v_lshl_add_u32 v3, v2, 4, v3")
    A("v_add_u32 v3, s35, v3")
    A("s_lshl_b32 s36, s32, 2")
    A("s_waitcnt lgkmcnt(0)")
    A("s_load_dword s37, s[12:13], s36")
    for kk in range(8):
        A(f"global_load_dwordx4 v[{Q0+4*kk}:{Q0+4*kk+3}], v3, s[4:5] offset:{32*kk} {qflags}")
    A("s_lshl_b32 s46, s34, 15")
    A("v_and_b32 v4, 15, v0")
    A("v_xor_b32 v4, v4, v2")
    A("v_lshlrev_b32 v4, 4, v4")
    A("v_lshl_add_u32 v4, v1, 8, v4")
    A(f"v_add_u32 v{KA}, s46, v4")
    for kk in range(1, 8):
        A(f"v_xor_b32 v{KA+kk}, {32*kk}, v{KA}")
    A("v_bfe_u32 v4, v0, 2, 2                 ; i>>2")
    A("v_lshl_add_u32 v5, v2, 2, v4           ; 4hf + (i>>2)")
    A("v_lshlrev_b32 v5, 8, v5")
    A("v_lshl_add_u32 v5, v4, 6, v5           ; + (i>>2)<<6")
    A("v_bfe_u32 v6, v0, 4, 1")
    A("v_lshl_add_u32 v5, v6, 5, v5")
    A("v_and_b32 v6, 3, v0")
    A("v_lshl_add_u32 v5, v6, 3, v5")
    A("s_add_u32 s47, s46, 8192")
    A(f"v_add_u32 v{VA}, s47, v5")
    for D in range(1, 4):
        A(f"v_xor_b32 v{VA+D}, {64*D}, v{VA}")
    for i in range(64):
        A(f"v_mov_b32 v{O0+i}, 0")
    A(f"v_mov_b32 v{vM}, {hex(f2u(-1e30))}")
    A(f"v_mov_b32 v{vL}, 0")
    A("v_mov_b32 v15, 0xff800000")
    A("s_waitcnt lgkmcnt(0)")
    A(f"s_mov_b32 s48, {hex(f2u(128**-0.5*math.log2(math.e)))}")
    A("s_cmp_gt_i32 s37, 0")
    A("s_cselect_b32 s48, s48, 0")
    A("s_cselect_b32 s37, s37, 2048")
    A("s_min_i32 s37, s37, 2048")
    A("s_add_u32 s38, s37, 31")
    A("s_lshr_b32 s38, s38, 5                 ; nt")
    A("s_sub_u32 s40, s38, 1")
    A("s_and_b32 s41, s40, 3")
    A("s_add_u32 s41, s41, 1                  ; m")
    A("s_add_u32 s42, s38, 3")
    A("s_lshr_b32 s42, s42, 2")
    A("s_lshl_b32 s40, s40, 5")
    A("s_sub_u32 s40, s37, s40")
    A("v_lshlrev_b32 v14, 2, v2")
    A("v_sub_u32 v14, s40, v14                ; thr")
    A("s_cmp_eq_u32 s34, 0")
    A("s_cselect_b32 s43, 1, 0")
    A("s_waitcnt vmcnt(0)")
    A("s_cmp_lt_u32 s34, s41")
    A("s_cbranch_scc1 L_round")
    A("s_barrier")
    A("s_barrier")
    A("s_branch L_round_end")
    A("L_round:")
    A("s_barrier")
    if stamps:
        A("s_cmp_lg_u32 s43, 0")
        A("s_cbranch_scc0 L_nost")
        A("s_memrealtime s[62:63]")
        A("s_waitcnt lgkmcnt(0)")
        A("L_nost:")
    for kk in range(8):
        A(f"ds_read_b128 v[{F0+4*kk}:{F0+4*kk+3}], v{KA+kk}")
    for kk in range(8):
        A(f"s_waitcnt lgkmcnt({7-kk})")
        c = "0" if kk == 0 else f"v[{S0}:{S0+15}]"
        A(f"v_mfma_f32_32x32x16_bf16 v[{S0}:{S0+15}], v[{F0+4*kk}:{F0+4*kk+3}], v[{Q0+4*kk}:{Q0+4*kk+3}], {c}")
    A("s_cmp_eq_u32 s43, 0")
    A("s_nop 10")
    A("s_cbranch_scc1 L_nomask")
    for v in range(16):
        A(f"v_cmp_lt_i32 vcc, {8*(v>>2)+(v&3)}, v14")
        A("s_nop 1")
        A(f"v_cndmask_b32 v{S0+v}, v15, v{S0+v}, vcc")
    A("s_mov_b32 s43, 0")
    A("L_nomask:")
    A(f"v_max3_f32 v30, v{S0}, v{S0+1}, v{S0+2}")
    A(f"v_max3_f32 v31, v{S0+3}, v{S0+4}, v{S0+5}")
    A(f"v_max3_f32 v30, v30, v{S0+6}, v{S0+7}")
    A(f"v_max3_f32 v31, v31, v{S0+8}, v{S0+9}")
    A(f"v_max3_f32 v30, v30, v{S0+10}, v{S0+11}")
    A(f"v_max3_f32 v31, v31, v{S0+12}, v{S0+13}")
    A(f"v_max3_f32 v30, v30, v{S0+14}, v{S0+15}")
    A("v_max_f32 v30, v30, v31")
    A("v_mov_b32 v31, v30")
    A("s_nop 1")
    A("v_permlane32_swap_b32 v30, v31")
    A(f"v_max3_f32 v30, v30, v31, v{vM}        ; m_new")
    A(f"v_sub_f32 v31, v{vM}, v30")
    A("v_mul_f32 v32, s48, v30                ; mc")
    A("v_mul_f32 v31, s48, v31")
    A(f"v_mov_b32 v{vM}, v30")
    A("v_exp_f32 v34, v31                     ; alpha")
    for v in range(16):
        A(f"v_fma_f32 v{S0+v}, v{S0+v}, s48, -v32")
    for v in range(16):
        A(f"v_exp_f32 v{S0+v}, v{S0+v}")
    A(f"v_mul_f32 v{vL}, v{vL}, v34")
    A(f"v_add_f32 v30, v{S0}, v{S0+1}")
    A(f"v_add_f32 v31, v{S0+2}, v{S0+3}")
    for v in range(4, 16, 2):
        A(f"v_add_f32 v30, v30, v{S0+v}")
        A(f"v_add_f32 v31, v31, v{S0+v+1}")
    for i in range(8):
        A(f"v_cvt_pk_bf16_f32 v{P0+i}, v{S0+2*i}, v{S0+2*i+1}")
    A("v_add_f32 v30, v30, v31")
    A(f"v_add_f32 v{vL}, v{vL}, v30")
    for i in range(0, 64, 2):
        A(f"v_pk_mul_f32 v[{O0+i}:{O0+i+1}], v[{O0+i}:{O0+i+1}], v[34:35] op_sel_hi:[1,0]")
    A("s_barrier")
    n = 0
    for s in range(2):
        for D in range(4):
            r = F0 + 4*(4*s + D)
            A(f"ds_read_b64_tr_b16 v[{r}:{r+1}], v{VA+D} offset:{4096*s}")
            A(f"ds_read_b64_tr_b16 v[{r+2}:{r+3}], v{VA+D} offset:{4096*s+2048}")
    for s in range(2):
        for D in range(4):
            idx = 4*s + D
            r = F0 + 4*idx
            A(f"s_waitcnt lgkmcnt({min(15, 14-2*idx)})")
            A(f"v_mfma_f32_32x32x16_bf16 v[{O0+16*D}:{O0+16*D+15}], v[{r}:{r+3}], v[{P0+4*s}:{P0+4*s+3}], v[{O0+16*D}:{O0+16*D+15}]")
    A("L_round_end:")
    for i in range(8): A(f"v_xor_b32 v{KA+i}, 0x4000, v{KA+i}")
    for i in range(4): A(f"v_xor_b32 v{VA+i}, 0x4000, v{VA+i}")
    A("s_sub_u32 s42, s42, 1")
    A("s_cmp_lg_u32 s42, 0")
    A("s_cbranch_scc1 L_round")
    if stamps:
        A("s_memrealtime s[64:65]")
    A(f"v_mov_b32 v30, v{vL}")
    A("v_lshlrev_b32 v4, 4, v0")
    A("v_add_u32 v5, s46, v4")
    A(f"v_permlane32_swap_b32 v30, v{vL}")
    A("v_lshlrev_b32 v6, 3, v0")
    A(f"v_add_f32 v{vL}, v{vL}, v30")
    A("v_add_u32 v7, s46, v6")
    A(f"ds_write_b64 v7, v[{vM}:{vL}] offset:16384")
    A("s_nop 4")
    for D in range(4):
        for i in range(4):
            r = O0 + 16*D + 4*i
            A(f"ds_write_b128 v5, v[{r}:{r+3}] offset:{4096*D + 1024*i}")
    A("s_lshl_b32 s47, s34, 12")
    A("v_add_u32 v8, s47, v4")
    A("v_add_u32 v9, 0x10000, v8")
    A("v_add_u32 v10, 0x10000, v6")
    A("s_waitcnt lgkmcnt(0)")
    A("s_barrier")
    A("ds_read_b64 v[30:31], v6 offset:16384")
    A(f"ds_read_b64 v[32:33], v6 offset:{16384+32768}")
    A("ds_read_b64 v[34:35], v10 offset:16384")
    A(f"ds_read_b64 v[36:37], v10 offset:{16384+32768}")
    for s in range(4):
        for i in range(4):
            r = O0 + 16*s + 4*i
            A(f"ds_read_b128 v[{r}:{r+3}], v{8 + s//2} offset:{32768*(s&1) + 1024*i}")
    A("s_waitcnt lgkmcnt(15)")
    A("v_max3_f32 v38, v30, v32, v34")
    A("v_max_f32 v38, v38, v36")
    for s in range(4):
        A(f"v_sub_f32 v{30+2*s}, v{30+2*s}, v38")
    for s in range(4):
        A(f"v_mul_f32 v{30+2*s}, s48, v{30+2*s}")
    for s in range(4):
        A(f"v_exp_f32 v{30+2*s}, v{30+2*s}")
    A("s_nop 0")
    A("v_mul_f32 v38, v30, v31")
    A("v_fmac_f32 v38, v32, v33")
    A("v_fmac_f32 v38, v34, v35")
    A("v_fmac_f32 v38, v36, v37")
    A("v_rcp_f32 v38, v38")
    A("s_lshl_b32 s47, s34, 6")
    A("v_add_u32 v3, s47, v3")
    for s in range(4):
        A(f"v_mul_f32 v{30+2*s}, v{30+2*s}, v38")
    A("s_waitcnt lgkmcnt(12)")
    for v in range(16):
        A(f"v_mul_f32 v{S0+v}, v{O0+v}, v30")
    for s in range(1, 4):
        A(f"s_waitcnt lgkmcnt({12-4*s})")
        for v in range(16):
            A(f"v_fmac_f32 v{S0+v}, v{O0+16*s+v}, v{30+2*s}")
    for i in range(8):
        A(f"v_cvt_pk_bf16_f32 v{P0+i}, v{S0+2*i}, v{S0+2*i+1}")
    A("s_nop 1")
    A(f"v_permlane32_swap_b32 v{P0}, v{P0+2}")
    A(f"v_permlane32_swap_b32 v{P0+1}, v{P0+3}")
    A(f"v_permlane32_swap_b32 v{P0+4}, v{P0+6}")
    A(f"v_permlane32_swap_b32 v{P0+5}, v{P0+7}")
    A(f"global_store_dwordx4 v3, v[{P0}:{P0+3}], s[14:15] {oflags}")
    A(f"global_store_dwordx4 v3, v[{P0+4}:{P0+7}], s[14:15] offset:32 {oflags}")
    if stamps:
        A("s_add_u32 s34, s34, 1")
        A("s_waitcnt vmcnt(0)")
        A("L_stamp:")
        A("s_memrealtime s[66:67]")
        A("s_mul_i32 s35, s2, 5"); A("s_add_u32 s35, s35, s34"); A("s_lshl_b32 s35, s35, 5")
        A("s_waitcnt lgkmcnt(0)")
        A("v_mov_b32 v12, s60"); A("v_mov_b32 v13, s61"); A("v_mov_b32 v14, s66"); A("v_mov_b32 v15, s67")
        A("v_mov_b32 v20, s62"); A("v_mov_b32 v21, s63"); A("v_mov_b32 v22, s64"); A("v_mov_b32 v23, s65")
        A("v_mov_b32 v16, s35")
        A("v_cmp_eq_u32 vcc, 0, v0")
        A("s_and_saveexec_b64 s[46:47], vcc")
        A("global_store_dwordx4 v16, v[12:15], s[58:59]")
        A("global_store_dwordx4 v16, v[20:23], s[58:59] offset:16")
        A("s_waitcnt vmcnt(0)")
    A("L_end:")
    A("s_endpgm")
    A('.section .rodata,"a"')
    A(".p2align 6")
    A(f".amdhsa_kernel {NAME}_kernel")
    A("  .amdhsa_next_free_vgpr 192")
    A("  .amdhsa_next_free_sgpr 72")
    A("  .amdhsa_accum_offset 192")
    A("  .amdhsa_group_segment_fixed_size 0")
    A("  .amdhsa_kernarg_size 64")
    A("  .amdhsa_user_sgpr_count 2")
    A("  .amdhsa_user_sgpr_kernarg_segment_ptr 1")
    A("  .amdhsa_system_sgpr_workgroup_id_x 1")
    A(".end_amdhsa_kernel")
    return "\n".join(o) + "\n"

if __name__ == "__main__":
    import json
    out = sys.argv[1]
    kw = {}
    for a in sys.argv[2:]:
        k, v = a.split("=", 1)
        try: v = json.loads(v)
        except Exception: pass
        kw[k] = v
    open(out, "w").write(gen(**kw))
```

```python
import sys, struct, math
NAME = "standalone__paged_block_table_kv_pagedattention__sampling"
KBYTES = 4100*32768
def f2u(x): return struct.unpack("<I", struct.pack("<f", x))[0]

HEADER = open("cdna_kernels/%s.s.ref" % NAME).read().split("; Override")[0]

def gen(flags="nt", nlo=16, nhi=32, alpha=23.0, fixedN=None, stamps=False, qflags="", oflags="", mapmode="bh", half=False, bias=0.0, dbg=False):
    if dbg: stamps = True
    o = []
    A = o.append
    A(HEADER.rstrip())
    A("; @launch grid=(256,1,1) block=(320,1,1) lds=131072")
    A('.amdgcn_target "amdgcn-amd-amdhsa--gfx950"')
    A(".text")
    A(f".globl {NAME}_kernel")
    A(".p2align 8")
    A(f".type {NAME}_kernel,@function")
    A(f"{NAME}_kernel:")
    A("s_cmp_ge_u32 s2, 256")
    A("s_cbranch_scc1 L_end")
    A("s_load_dwordx8 s[4:11], s[0:1], 0      ; q k v bt")
    A("s_load_dwordx4 s[12:15], s[0:1], 32")
    if stamps:
        A("s_memrealtime s[60:61]")
        A(f"s_load_dwordx2 s[58:59], s[0:1], {48 if dbg else 56}")
    if mapmode == "bh":
        A("s_lshr_b32 s32, s2, 3                  ; b")
        A("s_and_b32 s33, s2, 7                   ; h")
    else:
        A("s_and_b32 s32, s2, 31")
        A("s_lshr_b32 s33, s2, 5")
    A("v_lshrrev_b32 v1, 6, v0")
    A("v_and_b32 v0, 63, v0                   ; lane")
    A("v_readfirstlane_b32 s34, v1            ; wave")
    A("s_nop 1")
    A("s_cmp_lg_u32 s34, 0")
    A("s_cbranch_scc1 L_consumer")

    A("s_setprio 3")
    A("s_lshl_b32 s35, s32, 9")
    A("v_lshlrev_b32 v1, 3, v0")
    A("v_add_u32 v1, s35, v1")
    A("v_and_b32 v6, 31, v0")
    A("v_lshlrev_b32 v6, 2, v6")
    A("s_waitcnt lgkmcnt(0)")
    A("global_load_dwordx2 v[2:3], v1, s[10:11]")
    A("global_load_dword v7, v6, s[12:13]")
    if stamps: A("s_memrealtime s[62:63]")
    for base, p in ((16, 6), (20, 6), (24, 8), (28, 8)):
        A(f"s_mov_b32 s{base}, s{p}"); A(f"s_mov_b32 s{base+1}, s{p+1}")
        A(f"s_mov_b32 s{base+2}, {KBYTES}"); A(f"s_mov_b32 s{base+3}, 0x20000")
    A("v_lshrrev_b32 v4, 4, v0")
    A("v_and_b32 v5, 15, v0")
    A("v_lshlrev_b32 v16, 2, v4")
    A("v_xor_b32 v16, v5, v16")
    A("v_lshlrev_b32 v16, 4, v16")
    for j in range(4):
        A(f"v_add_u32 v17, {4*j}, v4")
        A("v_xor_b32 v18, v5, v17")
        A("v_lshlrev_b32 v18, 4, v18")
        A("v_lshlrev_b32 v17, 11, v17")
        if j: A(f"v_subrev_u32 v17, {1024*j}, v17")
        A(f"v_add_u32 v{8+j}, v17, v18")
        A(f"v_add_u32 v{12+j}, v17, v16")
    A("v_mov_b32 v19, 2048")
    A("s_lshl_b32 s36, s33, 8                 ; h*256")
    A("s_waitcnt vmcnt(0)")
    if stamps: A("s_memrealtime s[64:65]")
    A("v_cmp_lt_i32 vcc, 0, v7")
    A("v_min_i32 v7, v7, v19")
    A("v_lshlrev_b32 v2, 15, v2")
    A("v_cndmask_b32 v7, v19, v7, vcc")
    A("v_lshlrev_b32 v3, 15, v3")
    A("v_readlane_b32 s37, v7, s32            ; cl_eff")
    A("v_add_u32_dpp v20, v7, v7 row_shr:1 row_mask:0xf bank_mask:0xf bound_ctrl:0")
    A("v_lshlrev_b32 v21, 5, v0")
    A("v_sub_u32 v21, s37, v21")
    A("v_add_u32_dpp v20, v20, v20 row_shr:2 row_mask:0xf bank_mask:0xf bound_ctrl:0")
    A("v_med3_i32 v4, v21, 0, 16")
    A("v_subrev_u32 v21, 16, v21")
    A("v_add_u32_dpp v20, v20, v20 row_shr:4 row_mask:0xf bank_mask:0xf bound_ctrl:0")
    A("v_med3_i32 v5, v21, 0, 16")
    A("v_lshl_add_u32 v4, v4, 11, v2")
    A("v_add_u32_dpp v20, v20, v20 row_shr:8 row_mask:0xf bank_mask:0xf bound_ctrl:0")
    A("v_lshl_add_u32 v5, v5, 11, v3")
    A("v_min_u32 v4, s18, v4")
    A("v_add_u32_dpp v20, v20, v20 row_bcast:15 row_mask:0xa bank_mask:0xf")
    A("v_min_u32 v5, s18, v5")
    A("v_add_u32 v2, s36, v2")
    A("v_add_u32 v3, s36, v3")
    A("v_cvt_f32_u32 v20, v20")
    A("v_cvt_f32_u32 v22, s37")
    A("v_rcp_f32 v20, v20")
    mult = 2 if half else 1
    A(f"v_mul_f32 v22, {hex(f2u(alpha*32*mult))}, v22")
    A(f"v_mov_b32 v23, {hex(f2u(0.5 + bias*mult))}")
    A("v_fma_f32 v20, v20, v22, v23")
    A("v_cvt_u32_f32 v20, v20")
    A("s_add_u32 s38, s37, 31")
    A("s_lshr_b32 s38, s38, 5                 ; nt")
    A("v_readlane_b32 s39, v20, 31            ; N")
    A("s_sub_u32 s40, s38, 1")
    A("s_and_b32 s41, s40, 3")
    A("s_add_u32 s41, s41, 1")
    A("s_mov_b32 s42, 0")
    A("s_mov_b32 s44, s41                     ; pubinc")
    A("s_mov_b32 s45, s41")
    A("s_mov_b32 s46, 0")
    A("s_lshl_b32 s47, s38, 1")
    if fixedN is not None:
        Ns = [fixedN*mult]
    else:
        Ns = list(range(nlo*mult, nhi*mult+1))
    def dispatch(lst, top=False):
        if len(lst) == 1:
            A(f"s_branch L_ld{lst[0]}")
            return
        mid = len(lst)//2
        lab = f"L_disp{lst[mid]}_{lst[-1]}"
        A(f"s_cmp_ge_u32 s39, {lst[mid]}")
        if len(lst) - mid == 1:
            A(f"s_cbranch_scc1 L_ld{lst[mid]}")
            dispatch(lst[:mid])
        else:
            A(f"s_cbranch_scc1 {lab}")
            dispatch(lst[:mid])
            A(f"{lab}:")
            dispatch(lst[mid:])
    dispatch(Ns)
    for NN in Ns:
        if half:
            Nw = [ (NN//2) + (1 if (NN & 1) and (j & 1) else 0) for j in range(8)]
        else:
            Nw = [NN]*8
        x = 0
        while x < Nw[x % 8] - 1: x += 1
        q, p = x // 8, x % 8
        A(f"L_ld{NN}:")
        A(f"s_add_u32 s43, s41, {q}")
        A(f"L_ld{NN}_round:")
        for which, sa, sb, vo, lo in (("k", 16, 20, 8, 0), ("v", 24, 28, 12, 8192)):
            A("s_mov_b32 s48, s40")
            A(f"s_add_u32 s49, s46, {lo}")
            A("s_mov_b32 s50, s45")
            A(f"L_ld{NN}_{which}:")
            A("v_readlane_b32 s52, v2, s48")
            A(f"v_readlane_b32 s{sa+2}, v4, s48")
            A("v_readlane_b32 s53, v3, s48")
            A(f"v_readlane_b32 s{sb+2}, v5, s48")
            A("s_mov_b32 m0, s49")
            A("s_sub_u32 s48, s48, 1")
            A("s_add_u32 s49, s49, 32768")
            A("s_nop 1")
            for j in range(8):
                if j == 4: A("s_add_u32 m0, m0, 4096")
                A(f"s_waitcnt vmcnt({Nw[j]-1})")
                if j == p:
                    A("s_cmp_lg_u32 s42, s43")
                    A(f"s_cbranch_scc1 L_ld{NN}_{which}_np")
                    A("s_barrier")
                    A("s_add_u32 s43, s43, s44")
                    A("s_mov_b32 s44, 4")
                    A(f"L_ld{NN}_{which}_np:")
                srd = sa if j < 4 else sb
                A(f"buffer_load_dwordx4 v{vo + (j&3)}, s[{srd}:{srd+3}], s{52 + j//4} offen offset:{1024*(j&3)} {flags} lds")
            A("s_add_u32 s42, s42, 1")
            A("s_sub_u32 s50, s50, 1")
            A("s_cmp_lg_u32 s50, 0")
            A(f"s_cbranch_scc1 L_ld{NN}_{which}")
        A("s_sub_u32 s40, s40, s45")
        A("s_mov_b32 s45, 4")
        A("s_xor_b32 s46, s46, 16384")
        A("s_cmp_lt_u32 s42, s47")
        A(f"s_cbranch_scc1 L_ld{NN}_round")
        A(f"s_add_u32 s51, s47, {q}")
        A("s_sub_u32 s51, s51, s43                ; rem")
        A(f"s_branch L_drain{q}")
    for c in range(7, -1, -1):
        A(f"L_drain{c}:")
        A(f"s_cmp_lg_u32 s51, {c}")
        A(f"s_cbranch_scc1 L_drain{c}_n")
        A(f"s_waitcnt vmcnt({8*c})")
        A("s_barrier")
        A("s_sub_u32 s51, s51, s44")
        A("s_mov_b32 s44, 4")
        A(f"L_drain{c}_n:")
    if stamps:
        A("s_branch L_stamp")
    A("s_endpgm")

    O0, S0, Q0, F0, P0, KA, VA = 64, 48, 128, 160, 40, 16, 24
    vM, vL = 28, 29
    A("L_consumer:")
    A("s_sub_u32 s34, s34, 1                  ; cw")
    A("v_and_b32 v1, 31, v0")
    A("v_lshrrev_b32 v2, 5, v0                ; hf")
    A("s_lshl_b32 s35, s32, 16")
    A("s_lshl_b32 s36, s33, 13")
    A("s_add_u32 s35, s35, s36")
    A("v_lshlrev_b32 v3, 8, v1")
    A("v_lshl_add_u32 v3, v2, 4, v3")
    A("v_add_u32 v3, s35, v3")
    A("s_lshl_b32 s36, s32, 2")
    A("s_waitcnt lgkmcnt(0)")
    A("s_load_dword s37, s[12:13], s36")
    for kk in range(8):
        A(f"global_load_dwordx4 v[{Q0+4*kk}:{Q0+4*kk+3}], v3, s[4:5] offset:{32*kk} {qflags}")
    A("s_lshl_b32 s46, s34, 15")
    A("v_and_b32 v4, 15, v0")
    A("v_xor_b32 v4, v4, v2")
    A("v_lshlrev_b32 v4, 4, v4")
    A("v_lshl_add_u32 v4, v1, 8, v4")
    A(f"v_add_u32 v{KA}, s46, v4")
    for kk in range(1, 8):
        A(f"v_xor_b32 v{KA+kk}, {32*kk}, v{KA}")
    A("v_bfe_u32 v4, v0, 2, 2                 ; i>>2")
    A("v_lshl_add_u32 v5, v2, 2, v4           ; 4hf + (i>>2)")
    A("v_lshlrev_b32 v5, 8, v5")
    A("v_lshl_add_u32 v5, v4, 6, v5           ; + (i>>2)<<6")
    A("v_bfe_u32 v6, v0, 4, 1")
    A("v_lshl_add_u32 v5, v6, 5, v5")
    A("v_and_b32 v6, 3, v0")
    A("v_lshl_add_u32 v5, v6, 3, v5")
    A("s_add_u32 s47, s46, 8192")
    A(f"v_add_u32 v{VA}, s47, v5")
    for D in range(1, 4):
        A(f"v_xor_b32 v{VA+D}, {64*D}, v{VA}")
    for i in range(64):
        A(f"v_mov_b32 v{O0+i}, 0")
    A(f"v_mov_b32 v{vM}, {hex(f2u(-1e30))}")
    A(f"v_mov_b32 v{vL}, 0")
    A("v_mov_b32 v15, 0xff800000")
    A("s_waitcnt lgkmcnt(0)")
    A(f"s_mov_b32 s48, {hex(f2u(128**-0.5*math.log2(math.e)))}")
    A("s_cmp_gt_i32 s37, 0")
    A("s_cselect_b32 s48, s48, 0")
    A("s_cselect_b32 s37, s37, 2048")
    A("s_min_i32 s37, s37, 2048")
    A("s_add_u32 s38, s37, 31")
    A("s_lshr_b32 s38, s38, 5                 ; nt")
    A("s_sub_u32 s40, s38, 1")
    A("s_and_b32 s41, s40, 3")
    A("s_add_u32 s41, s41, 1                  ; m")
    A("s_add_u32 s42, s38, 3")
    A("s_lshr_b32 s42, s42, 2")
    A("s_lshl_b32 s40, s40, 5")
    A("s_sub_u32 s40, s37, s40")
    A("v_lshlrev_b32 v14, 2, v2")
    A("v_sub_u32 v14, s40, v14                ; thr")
    A("s_cmp_eq_u32 s34, 0")
    A("s_cselect_b32 s43, 1, 0")
    A("s_waitcnt vmcnt(0)")
    A("s_cmp_lt_u32 s34, s41")
    A("s_cbranch_scc1 L_round")
    A("s_barrier")
    A("s_barrier")
    A("s_branch L_round_end")
    A("L_round:")
    A("s_barrier")
    if stamps:
        A("s_cmp_lg_u32 s43, 0")
        A("s_cbranch_scc0 L_nost")
        A("s_memrealtime s[62:63]")
        A("s_waitcnt lgkmcnt(0)")
        A("L_nost:")
    for kk in range(8):
        A(f"ds_read_b128 v[{F0+4*kk}:{F0+4*kk+3}], v{KA+kk}")
    for kk in range(8):
        A(f"s_waitcnt lgkmcnt({7-kk})")
        c = "0" if kk == 0 else f"v[{S0}:{S0+15}]"
        A(f"v_mfma_f32_32x32x16_bf16 v[{S0}:{S0+15}], v[{F0+4*kk}:{F0+4*kk+3}], v[{Q0+4*kk}:{Q0+4*kk+3}], {c}")
    A("s_cmp_eq_u32 s43, 0")
    A("s_nop 10")
    A("s_cbranch_scc1 L_nomask")
    for v in range(16):
        A(f"v_cmp_lt_i32 vcc, {8*(v>>2)+(v&3)}, v14")
        A("s_nop 1")
        A(f"v_cndmask_b32 v{S0+v}, v15, v{S0+v}, vcc")
    A("s_mov_b32 s43, 0")
    A("L_nomask:")
    A(f"v_max3_f32 v30, v{S0}, v{S0+1}, v{S0+2}")
    A(f"v_max3_f32 v31, v{S0+3}, v{S0+4}, v{S0+5}")
    A(f"v_max3_f32 v30, v30, v{S0+6}, v{S0+7}")
    A(f"v_max3_f32 v31, v31, v{S0+8}, v{S0+9}")
    A(f"v_max3_f32 v30, v30, v{S0+10}, v{S0+11}")
    A(f"v_max3_f32 v31, v31, v{S0+12}, v{S0+13}")
    A(f"v_max3_f32 v30, v30, v{S0+14}, v{S0+15}")
    A("v_max_f32 v30, v30, v31")
    A("v_mov_b32 v31, v30")
    A("s_nop 1")
    A("v_permlane32_swap_b32 v30, v31")
    A(f"v_max3_f32 v30, v30, v31, v{vM}        ; m_new")
    A(f"v_sub_f32 v31, v{vM}, v30")
    A("v_mul_f32 v32, s48, v30                ; mc")
    A("v_mul_f32 v31, s48, v31")
    A(f"v_mov_b32 v{vM}, v30")
    A("v_exp_f32 v34, v31                     ; alpha")
    for v in range(16):
        A(f"v_fma_f32 v{S0+v}, v{S0+v}, s48, -v32")
    for v in range(16):
        A(f"v_exp_f32 v{S0+v}, v{S0+v}")
    A(f"v_mul_f32 v{vL}, v{vL}, v34")
    A(f"v_add_f32 v30, v{S0}, v{S0+1}")
    A(f"v_add_f32 v31, v{S0+2}, v{S0+3}")
    for v in range(4, 16, 2):
        A(f"v_add_f32 v30, v30, v{S0+v}")
        A(f"v_add_f32 v31, v31, v{S0+v+1}")
    for i in range(8):
        A(f"v_cvt_pk_bf16_f32 v{P0+i}, v{S0+2*i}, v{S0+2*i+1}")
    A("v_add_f32 v30, v30, v31")
    A(f"v_add_f32 v{vL}, v{vL}, v30")
    for i in range(0, 64, 2):
        A(f"v_pk_mul_f32 v[{O0+i}:{O0+i+1}], v[{O0+i}:{O0+i+1}], v[34:35] op_sel_hi:[1,0]")
    A("s_barrier")
    n = 0
    for s in range(2):
        for D in range(4):
            r = F0 + 4*(4*s + D)
            A(f"ds_read_b64_tr_b16 v[{r}:{r+1}], v{VA+D} offset:{4096*s}")
            A(f"ds_read_b64_tr_b16 v[{r+2}:{r+3}], v{VA+D} offset:{4096*s+2048}")
    for s in range(2):
        for D in range(4):
            idx = 4*s + D
            r = F0 + 4*idx
            A(f"s_waitcnt lgkmcnt({min(15, 14-2*idx)})")
            A(f"v_mfma_f32_32x32x16_bf16 v[{O0+16*D}:{O0+16*D+15}], v[{r}:{r+3}], v[{P0+4*s}:{P0+4*s+3}], v[{O0+16*D}:{O0+16*D+15}]")
    A("L_round_end:")
    for i in range(8): A(f"v_xor_b32 v{KA+i}, 0x4000, v{KA+i}")
    for i in range(4): A(f"v_xor_b32 v{VA+i}, 0x4000, v{VA+i}")
    A("s_sub_u32 s42, s42, 1")
    A("s_cmp_lg_u32 s42, 0")
    A("s_cbranch_scc1 L_round")
    if stamps:
        A("s_memrealtime s[64:65]")
    A(f"v_mov_b32 v30, v{vL}")
    A("v_lshlrev_b32 v4, 4, v0")
    A("v_add_u32 v5, s46, v4")
    A(f"v_permlane32_swap_b32 v30, v{vL}")
    A("v_lshlrev_b32 v6, 3, v0")
    A(f"v_add_f32 v{vL}, v{vL}, v30")
    A("v_add_u32 v7, s46, v6")
    A(f"ds_write_b64 v7, v[{vM}:{vL}] offset:16384")
    A("s_nop 4")
    for D in range(4):
        for i in range(4):
            r = O0 + 16*D + 4*i
            A(f"ds_write_b128 v5, v[{r}:{r+3}] offset:{4096*D + 1024*i}")
    A("s_lshl_b32 s47, s34, 12")
    A("v_add_u32 v8, s47, v4")
    A("v_add_u32 v9, 0x10000, v8")
    A("v_add_u32 v10, 0x10000, v6")
    A("s_waitcnt lgkmcnt(0)")
    A("s_barrier")
    A("ds_read_b64 v[30:31], v6 offset:16384")
    A(f"ds_read_b64 v[32:33], v6 offset:{16384+32768}")
    A("ds_read_b64 v[34:35], v10 offset:16384")
    A(f"ds_read_b64 v[36:37], v10 offset:{16384+32768}")
    for s in range(4):
        for i in range(4):
            r = O0 + 16*s + 4*i
            A(f"ds_read_b128 v[{r}:{r+3}], v{8 + s//2} offset:{32768*(s&1) + 1024*i}")
    A("s_waitcnt lgkmcnt(15)")
    A("v_max3_f32 v38, v30, v32, v34")
    A("v_max_f32 v38, v38, v36")
    for s in range(4):
        A(f"v_sub_f32 v{30+2*s}, v{30+2*s}, v38")
    for s in range(4):
        A(f"v_mul_f32 v{30+2*s}, s48, v{30+2*s}")
    for s in range(4):
        A(f"v_exp_f32 v{30+2*s}, v{30+2*s}")
    A("s_nop 0")
    A("v_mul_f32 v38, v30, v31")
    A("v_fmac_f32 v38, v32, v33")
    A("v_fmac_f32 v38, v34, v35")
    A("v_fmac_f32 v38, v36, v37")
    A("v_rcp_f32 v38, v38")
    A("s_lshl_b32 s47, s34, 6")
    A("v_add_u32 v3, s47, v3")
    for s in range(4):
        A(f"v_mul_f32 v{30+2*s}, v{30+2*s}, v38")
    A("s_waitcnt lgkmcnt(12)")
    for v in range(16):
        A(f"v_mul_f32 v{S0+v}, v{O0+v}, v30")
    for s in range(1, 4):
        A(f"s_waitcnt lgkmcnt({12-4*s})")
        for v in range(16):
            A(f"v_fmac_f32 v{S0+v}, v{O0+16*s+v}, v{30+2*s}")
    for i in range(8):
        A(f"v_cvt_pk_bf16_f32 v{P0+i}, v{S0+2*i}, v{S0+2*i+1}")
    A("s_nop 1")
    A(f"v_permlane32_swap_b32 v{P0}, v{P0+2}")
    A(f"v_permlane32_swap_b32 v{P0+1}, v{P0+3}")
    A(f"v_permlane32_swap_b32 v{P0+4}, v{P0+6}")
    A(f"v_permlane32_swap_b32 v{P0+5}, v{P0+7}")
    A(f"global_store_dwordx4 v3, v[{P0}:{P0+3}], s[14:15] {oflags}")
    A(f"global_store_dwordx4 v3, v[{P0+4}:{P0+7}], s[14:15] offset:32 {oflags}")
    if stamps:
        A("s_add_u32 s34, s34, 1")
        A("s_waitcnt vmcnt(0)")
        A("L_stamp:")
        A("s_memrealtime s[66:67]")
        A("s_mul_i32 s35, s2, 5"); A("s_add_u32 s35, s35, s34"); A("s_lshl_b32 s35, s35, 5")
        A("s_waitcnt lgkmcnt(0)")
        A("v_mov_b32 v12, s60"); A("v_mov_b32 v13, s61"); A("v_mov_b32 v14, s66"); A("v_mov_b32 v15, s67")
        A("v_mov_b32 v20, s62"); A("v_mov_b32 v21, s63"); A("v_mov_b32 v22, s64"); A("v_mov_b32 v23, s65")
        A("v_mov_b32 v16, s35")
        A("v_cmp_eq_u32 vcc, 0, v0")
        A("s_and_saveexec_b64 s[46:47], vcc")
        if dbg:
            A("v_not_b32 v12, v12")
            A("v_mov_b32 v16, 0")
            A("s_lshl_b32 s33, s33, 2")
            A("v_mov_b32 v17, s33")
            A("global_atomic_umax v16, v12, s[58:59]")
            A("global_atomic_umax v16, v14, s[58:59] offset:4")
            A("global_atomic_umax v17, v14, s[58:59] offset:32")
            A("s_cmp_eq_u32 s34, 0")
            A("s_cbranch_scc0 L_nodbg2")
            A("global_atomic_umax v16, v20, s[58:59] offset:8")
            A("global_atomic_umax v16, v22, s[58:59] offset:12")
            A("v_not_b32 v14, v14")
            A("global_atomic_umax v16, v14, s[58:59] offset:16")
            A("v_not_b32 v12, v12")
            A("global_atomic_umax v16, v12, s[58:59] offset:20")
            A("L_nodbg2:")
            A("s_cmp_eq_u32 s34, 1")
            A("s_cbranch_scc0 L_nodbg3")
            A("global_atomic_umax v16, v20, s[58:59] offset:24")
            A("L_nodbg3:")
        else:
            A("global_store_dwordx4 v16, v[12:15], s[58:59]")
            A("global_store_dwordx4 v16, v[20:23], s[58:59] offset:16")
        A("s_waitcnt vmcnt(0)")
    A("L_end:")
    A("s_endpgm")
    A('.section .rodata,"a"')
    A(".p2align 6")
    A(f".amdhsa_kernel {NAME}_kernel")
    A("  .amdhsa_next_free_vgpr 192")
    A("  .amdhsa_next_free_sgpr 72")
    A("  .amdhsa_accum_offset 192")
    A("  .amdhsa_group_segment_fixed_size 0")
    A("  .amdhsa_kernarg_size 64")
    A("  .amdhsa_user_sgpr_count 2")
    A("  .amdhsa_user_sgpr_kernarg_segment_ptr 1")
    A("  .amdhsa_system_sgpr_workgroup_id_x 1")
    A(".end_amdhsa_kernel")
    return "\n".join(o) + "\n"

if __name__ == "__main__":
    import json
    out = sys.argv[1]
    kw = {}
    for a in sys.argv[2:]:
        k, v = a.split("=", 1)
        try: v = json.loads(v)
        except Exception: pass
        kw[k] = v
    open(out, "w").write(gen(**kw))
```

```python
import sys, struct, math
NAME = "standalone__paged_block_table_kv_pagedattention__sampling"
KBYTES = 4100*32768
def f2u(x): return struct.unpack("<I", struct.pack("<f", x))[0]

HEADER = open("cdna_kernels/%s.s.ref" % NAME).read().split("; Override")[0]

def gen(flags="nt", nlo=16, nhi=32, alpha=23.0, fixedN=None, stamps=False, qflags="", oflags="", mapmode="bh", half=False, bias=0.0, dbg=False, kflags=None, vflags=None):
    if kflags is None: kflags = flags
    if vflags is None: vflags = flags
    if dbg: stamps = True
    o = []
    A = o.append
    A(HEADER.rstrip())
    A("; @launch grid=(256,1,1) block=(320,1,1) lds=131072")
    A('.amdgcn_target "amdgcn-amd-amdhsa--gfx950"')
    A(".text")
    A(f".globl {NAME}_kernel")
    A(".p2align 8")
    A(f".type {NAME}_kernel,@function")
    A(f"{NAME}_kernel:")
    A("s_cmp_ge_u32 s2, 256")
    A("s_cbranch_scc1 L_end")
    A("s_load_dwordx8 s[4:11], s[0:1], 0      ; q k v bt")
    A("s_load_dwordx4 s[12:15], s[0:1], 32")
    if stamps:
        A("s_memrealtime s[60:61]")
        A(f"s_load_dwordx2 s[58:59], s[0:1], {48 if dbg else 56}")
    if mapmode == "bh":
        A("s_lshr_b32 s32, s2, 3                  ; b")
        A("s_and_b32 s33, s2, 7                   ; h")
    else:
        A("s_and_b32 s32, s2, 31")
        A("s_lshr_b32 s33, s2, 5")
    A("v_lshrrev_b32 v1, 6, v0")
    A("v_and_b32 v0, 63, v0                   ; lane")
    A("v_readfirstlane_b32 s34, v1            ; wave")
    A("s_nop 1")
    A("s_cmp_lg_u32 s34, 0")
    A("s_cbranch_scc1 L_consumer")

    A("s_setprio 3")
    A("s_lshl_b32 s35, s32, 9")
    A("v_lshlrev_b32 v1, 3, v0")
    A("v_add_u32 v1, s35, v1")
    A("v_and_b32 v6, 31, v0")
    A("v_lshlrev_b32 v6, 2, v6")
    A("s_waitcnt lgkmcnt(0)")
    A("global_load_dwordx2 v[2:3], v1, s[10:11]")
    A("global_load_dword v7, v6, s[12:13]")
    if stamps: A("s_memrealtime s[62:63]")
    for base, p in ((16, 6), (20, 6), (24, 8), (28, 8)):
        A(f"s_mov_b32 s{base}, s{p}"); A(f"s_mov_b32 s{base+1}, s{p+1}")
        A(f"s_mov_b32 s{base+2}, {KBYTES}"); A(f"s_mov_b32 s{base+3}, 0x20000")
    A("v_lshrrev_b32 v4, 4, v0")
    A("v_and_b32 v5, 15, v0")
    A("v_lshlrev_b32 v16, 2, v4")
    A("v_xor_b32 v16, v5, v16")
    A("v_lshlrev_b32 v16, 4, v16")
    for j in range(4):
        A(f"v_add_u32 v17, {4*j}, v4")
        A("v_xor_b32 v18, v5, v17")
        A("v_lshlrev_b32 v18, 4, v18")
        A("v_lshlrev_b32 v17, 11, v17")
        if j: A(f"v_subrev_u32 v17, {1024*j}, v17")
        A(f"v_add_u32 v{8+j}, v17, v18")
        A(f"v_add_u32 v{12+j}, v17, v16")
    A("v_mov_b32 v19, 2048")
    A("s_lshl_b32 s36, s33, 8                 ; h*256")
    A("s_waitcnt vmcnt(0)")
    if stamps: A("s_memrealtime s[64:65]")
    A("v_cmp_lt_i32 vcc, 0, v7")
    A("v_min_i32 v7, v7, v19")
    A("v_lshlrev_b32 v2, 15, v2")
    A("v_cndmask_b32 v7, v19, v7, vcc")
    A("v_lshlrev_b32 v3, 15, v3")
    A("v_readlane_b32 s37, v7, s32            ; cl_eff")
    A("v_add_u32_dpp v20, v7, v7 row_shr:1 row_mask:0xf bank_mask:0xf bound_ctrl:0")
    A("v_lshlrev_b32 v21, 5, v0")
    A("v_sub_u32 v21, s37, v21")
    A("v_add_u32_dpp v20, v20, v20 row_shr:2 row_mask:0xf bank_mask:0xf bound_ctrl:0")
    A("v_med3_i32 v4, v21, 0, 16")
    A("v_subrev_u32 v21, 16, v21")
    A("v_add_u32_dpp v20, v20, v20 row_shr:4 row_mask:0xf bank_mask:0xf bound_ctrl:0")
    A("v_med3_i32 v5, v21, 0, 16")
    A("v_lshl_add_u32 v4, v4, 11, v2")
    A("v_add_u32_dpp v20, v20, v20 row_shr:8 row_mask:0xf bank_mask:0xf bound_ctrl:0")
    A("v_lshl_add_u32 v5, v5, 11, v3")
    A("v_min_u32 v4, s18, v4")
    A("v_add_u32_dpp v20, v20, v20 row_bcast:15 row_mask:0xa bank_mask:0xf")
    A("v_min_u32 v5, s18, v5")
    A("v_add_u32 v2, s36, v2")
    A("v_add_u32 v3, s36, v3")
    A("v_cvt_f32_u32 v20, v20")
    A("v_cvt_f32_u32 v22, s37")
    A("v_rcp_f32 v20, v20")
    mult = 2 if half else 1
    A(f"v_mul_f32 v22, {hex(f2u(alpha*32*mult))}, v22")
    A(f"v_mov_b32 v23, {hex(f2u(0.5 + bias*mult))}")
    A("v_fma_f32 v20, v20, v22, v23")
    A("v_cvt_u32_f32 v20, v20")
    A("s_add_u32 s38, s37, 31")
    A("s_lshr_b32 s38, s38, 5                 ; nt")
    A("v_readlane_b32 s39, v20, 31            ; N")
    A("s_sub_u32 s40, s38, 1")
    A("s_and_b32 s41, s40, 3")
    A("s_add_u32 s41, s41, 1")
    A("s_mov_b32 s42, 0")
    A("s_mov_b32 s44, s41                     ; pubinc")
    A("s_mov_b32 s45, s41")
    A("s_mov_b32 s46, 0")
    A("s_lshl_b32 s47, s38, 1")
    if fixedN is not None:
        Ns = [fixedN*mult]
    else:
        Ns = list(range(nlo*mult, nhi*mult+1))
    def dispatch(lst, top=False):
        if len(lst) == 1:
            A(f"s_branch L_ld{lst[0]}")
            return
        mid = len(lst)//2
        lab = f"L_disp{lst[mid]}_{lst[-1]}"
        A(f"s_cmp_ge_u32 s39, {lst[mid]}")
        if len(lst) - mid == 1:
            A(f"s_cbranch_scc1 L_ld{lst[mid]}")
            dispatch(lst[:mid])
        else:
            A(f"s_cbranch_scc1 {lab}")
            dispatch(lst[:mid])
            A(f"{lab}:")
            dispatch(lst[mid:])
    dispatch(Ns)
    for NN in Ns:
        if half:
            Nw = [ (NN//2) + (1 if (NN & 1) and (j & 1) else 0) for j in range(8)]
        else:
            Nw = [NN]*8
        x = 0
        while x < Nw[x % 8] - 1: x += 1
        q, p = x // 8, x % 8
        A(f"L_ld{NN}:")
        A(f"s_add_u32 s43, s41, {q}")
        A(f"L_ld{NN}_round:")
        for which, sa, sb, vo, lo in (("k", 16, 20, 8, 0), ("v", 24, 28, 12, 8192)):
            A("s_mov_b32 s48, s40")
            A(f"s_add_u32 s49, s46, {lo}")
            A("s_mov_b32 s50, s45")
            A(f"L_ld{NN}_{which}:")
            A("v_readlane_b32 s52, v2, s48")
            A(f"v_readlane_b32 s{sa+2}, v4, s48")
            A("v_readlane_b32 s53, v3, s48")
            A(f"v_readlane_b32 s{sb+2}, v5, s48")
            A("s_mov_b32 m0, s49")
            A("s_sub_u32 s48, s48, 1")
            A("s_add_u32 s49, s49, 32768")
            A("s_nop 1")
            for j in range(8):
                if j == 4: A("s_add_u32 m0, m0, 4096")
                A(f"s_waitcnt vmcnt({Nw[j]-1})")
                if j == p:
                    A("s_cmp_lg_u32 s42, s43")
                    A(f"s_cbranch_scc1 L_ld{NN}_{which}_np")
                    A("s_barrier")
                    A("s_add_u32 s43, s43, s44")
                    A("s_mov_b32 s44, 4")
                    A(f"L_ld{NN}_{which}_np:")
                srd = sa if j < 4 else sb
                A(f"buffer_load_dwordx4 v{vo + (j&3)}, s[{srd}:{srd+3}], s{52 + j//4} offen offset:{1024*(j&3)} {kflags if which == chr(107) else vflags} lds")
            A("s_add_u32 s42, s42, 1")
            A("s_sub_u32 s50, s50, 1")
            A("s_cmp_lg_u32 s50, 0")
            A(f"s_cbranch_scc1 L_ld{NN}_{which}")
        A("s_sub_u32 s40, s40, s45")
        A("s_mov_b32 s45, 4")
        A("s_xor_b32 s46, s46, 16384")
        A("s_cmp_lt_u32 s42, s47")
        A(f"s_cbranch_scc1 L_ld{NN}_round")
        A(f"s_add_u32 s51, s47, {q}")
        A("s_sub_u32 s51, s51, s43                ; rem")
        A(f"s_branch L_drain{q}")
    for c in range(7, -1, -1):
        A(f"L_drain{c}:")
        A(f"s_cmp_lg_u32 s51, {c}")
        A(f"s_cbranch_scc1 L_drain{c}_n")
        A(f"s_waitcnt vmcnt({8*c})")
        A("s_barrier")
        A("s_sub_u32 s51, s51, s44")
        A("s_mov_b32 s44, 4")
        A(f"L_drain{c}_n:")
    if stamps:
        A("s_branch L_stamp")
    A("s_endpgm")

    O0, S0, Q0, F0, P0, KA, VA = 64, 48, 128, 160, 40, 16, 24
    vM, vL = 28, 29
    A("L_consumer:")
    A("s_sub_u32 s34, s34, 1                  ; cw")
    A("v_and_b32 v1, 31, v0")
    A("v_lshrrev_b32 v2, 5, v0                ; hf")
    A("s_lshl_b32 s35, s32, 16")
    A("s_lshl_b32 s36, s33, 13")
    A("s_add_u32 s35, s35, s36")
    A("v_lshlrev_b32 v3, 8, v1")
    A("v_lshl_add_u32 v3, v2, 4, v3")
    A("v_add_u32 v3, s35, v3")
    A("s_lshl_b32 s36, s32, 2")
    A("s_waitcnt lgkmcnt(0)")
    A("s_load_dword s37, s[12:13], s36")
    for kk in range(8):
        A(f"global_load_dwordx4 v[{Q0+4*kk}:{Q0+4*kk+3}], v3, s[4:5] offset:{32*kk} {qflags}")
    A("s_lshl_b32 s46, s34, 15")
    A("v_and_b32 v4, 15, v0")
    A("v_xor_b32 v4, v4, v2")
    A("v_lshlrev_b32 v4, 4, v4")
    A("v_lshl_add_u32 v4, v1, 8, v4")
    A(f"v_add_u32 v{KA}, s46, v4")
    for kk in range(1, 8):
        A(f"v_xor_b32 v{KA+kk}, {32*kk}, v{KA}")
    A("v_bfe_u32 v4, v0, 2, 2                 ; i>>2")
    A("v_lshl_add_u32 v5, v2, 2, v4           ; 4hf + (i>>2)")
    A("v_lshlrev_b32 v5, 8, v5")
    A("v_lshl_add_u32 v5, v4, 6, v5           ; + (i>>2)<<6")
    A("v_bfe_u32 v6, v0, 4, 1")
    A("v_lshl_add_u32 v5, v6, 5, v5")
    A("v_and_b32 v6, 3, v0")
    A("v_lshl_add_u32 v5, v6, 3, v5")
    A("s_add_u32 s47, s46, 8192")
    A(f"v_add_u32 v{VA}, s47, v5")
    for D in range(1, 4):
        A(f"v_xor_b32 v{VA+D}, {64*D}, v{VA}")
    for i in range(64):
        A(f"v_mov_b32 v{O0+i}, 0")
    A(f"v_mov_b32 v{vM}, {hex(f2u(-1e30))}")
    A(f"v_mov_b32 v{vL}, 0")
    A("v_mov_b32 v15, 0xff800000")
    A("s_waitcnt lgkmcnt(0)")
    A(f"s_mov_b32 s48, {hex(f2u(128**-0.5*math.log2(math.e)))}")
    A("s_cmp_gt_i32 s37, 0")
    A("s_cselect_b32 s48, s48, 0")
    A("s_cselect_b32 s37, s37, 2048")
    A("s_min_i32 s37, s37, 2048")
    A("s_add_u32 s38, s37, 31")
    A("s_lshr_b32 s38, s38, 5                 ; nt")
    A("s_sub_u32 s40, s38, 1")
    A("s_and_b32 s41, s40, 3")
    A("s_add_u32 s41, s41, 1                  ; m")
    A("s_add_u32 s42, s38, 3")
    A("s_lshr_b32 s42, s42, 2")
    A("s_lshl_b32 s40, s40, 5")
    A("s_sub_u32 s40, s37, s40")
    A("v_lshlrev_b32 v14, 2, v2")
    A("v_sub_u32 v14, s40, v14                ; thr")
    A("s_cmp_eq_u32 s34, 0")
    A("s_cselect_b32 s43, 1, 0")
    A("s_waitcnt vmcnt(0)")
    A("s_cmp_lt_u32 s34, s41")
    A("s_cbranch_scc1 L_round")
    A("s_barrier")
    A("s_barrier")
    A("s_branch L_round_end")
    A("L_round:")
    A("s_barrier")
    if stamps:
        A("s_cmp_lg_u32 s43, 0")
        A("s_cbranch_scc0 L_nost")
        A("s_memrealtime s[62:63]")
        A("s_waitcnt lgkmcnt(0)")
        A("L_nost:")
    for kk in range(8):
        A(f"ds_read_b128 v[{F0+4*kk}:{F0+4*kk+3}], v{KA+kk}")
    for kk in range(8):
        A(f"s_waitcnt lgkmcnt({7-kk})")
        c = "0" if kk == 0 else f"v[{S0}:{S0+15}]"
        A(f"v_mfma_f32_32x32x16_bf16 v[{S0}:{S0+15}], v[{F0+4*kk}:{F0+4*kk+3}], v[{Q0+4*kk}:{Q0+4*kk+3}], {c}")
    A("s_cmp_eq_u32 s43, 0")
    A("s_nop 10")
    A("s_cbranch_scc1 L_nomask")
    for v in range(16):
        A(f"v_cmp_lt_i32 vcc, {8*(v>>2)+(v&3)}, v14")
        A("s_nop 1")
        A(f"v_cndmask_b32 v{S0+v}, v15, v{S0+v}, vcc")
    A("s_mov_b32 s43, 0")
    A("L_nomask:")
    A(f"v_max3_f32 v30, v{S0}, v{S0+1}, v{S0+2}")
    A(f"v_max3_f32 v31, v{S0+3}, v{S0+4}, v{S0+5}")
    A(f"v_max3_f32 v30, v30, v{S0+6}, v{S0+7}")
    A(f"v_max3_f32 v31, v31, v{S0+8}, v{S0+9}")
    A(f"v_max3_f32 v30, v30, v{S0+10}, v{S0+11}")
    A(f"v_max3_f32 v31, v31, v{S0+12}, v{S0+13}")
    A(f"v_max3_f32 v30, v30, v{S0+14}, v{S0+15}")
    A("v_max_f32 v30, v30, v31")
    A("v_mov_b32 v31, v30")
    A("s_nop 1")
    A("v_permlane32_swap_b32 v30, v31")
    A(f"v_max3_f32 v30, v30, v31, v{vM}        ; m_new")
    A(f"v_sub_f32 v31, v{vM}, v30")
    A("v_mul_f32 v32, s48, v30                ; mc")
    A("v_mul_f32 v31, s48, v31")
    A(f"v_mov_b32 v{vM}, v30")
    A("v_exp_f32 v34, v31                     ; alpha")
    for v in range(16):
        A(f"v_fma_f32 v{S0+v}, v{S0+v}, s48, -v32")
    for v in range(16):
        A(f"v_exp_f32 v{S0+v}, v{S0+v}")
    A(f"v_mul_f32 v{vL}, v{vL}, v34")
    A(f"v_add_f32 v30, v{S0}, v{S0+1}")
    A(f"v_add_f32 v31, v{S0+2}, v{S0+3}")
    for v in range(4, 16, 2):
        A(f"v_add_f32 v30, v30, v{S0+v}")
        A(f"v_add_f32 v31, v31, v{S0+v+1}")
    for i in range(8):
        A(f"v_cvt_pk_bf16_f32 v{P0+i}, v{S0+2*i}, v{S0+2*i+1}")
    A("v_add_f32 v30, v30, v31")
    A(f"v_add_f32 v{vL}, v{vL}, v30")
    for i in range(0, 64, 2):
        A(f"v_pk_mul_f32 v[{O0+i}:{O0+i+1}], v[{O0+i}:{O0+i+1}], v[34:35] op_sel_hi:[1,0]")
    A("s_barrier")
    n = 0
    for s in range(2):
        for D in range(4):
            r = F0 + 4*(4*s + D)
            A(f"ds_read_b64_tr_b16 v[{r}:{r+1}], v{VA+D} offset:{4096*s}")
            A(f"ds_read_b64_tr_b16 v[{r+2}:{r+3}], v{VA+D} offset:{4096*s+2048}")
    for s in range(2):
        for D in range(4):
            idx = 4*s + D
            r = F0 + 4*idx
            A(f"s_waitcnt lgkmcnt({min(15, 14-2*idx)})")
            A(f"v_mfma_f32_32x32x16_bf16 v[{O0+16*D}:{O0+16*D+15}], v[{r}:{r+3}], v[{P0+4*s}:{P0+4*s+3}], v[{O0+16*D}:{O0+16*D+15}]")
    A("L_round_end:")
    for i in range(8): A(f"v_xor_b32 v{KA+i}, 0x4000, v{KA+i}")
    for i in range(4): A(f"v_xor_b32 v{VA+i}, 0x4000, v{VA+i}")
    A("s_sub_u32 s42, s42, 1")
    A("s_cmp_lg_u32 s42, 0")
    A("s_cbranch_scc1 L_round")
    if stamps:
        A("s_memrealtime s[64:65]")
    A(f"v_mov_b32 v30, v{vL}")
    A("v_lshlrev_b32 v4, 4, v0")
    A("v_add_u32 v5, s46, v4")
    A(f"v_permlane32_swap_b32 v30, v{vL}")
    A("v_lshlrev_b32 v6, 3, v0")
    A(f"v_add_f32 v{vL}, v{vL}, v30")
    A("v_add_u32 v7, s46, v6")
    A(f"ds_write_b64 v7, v[{vM}:{vL}] offset:16384")
    A("s_nop 4")
    for D in range(4):
        for i in range(4):
            r = O0 + 16*D + 4*i
            A(f"ds_write_b128 v5, v[{r}:{r+3}] offset:{4096*D + 1024*i}")
    A("s_lshl_b32 s47, s34, 12")
    A("v_add_u32 v8, s47, v4")
    A("v_add_u32 v9, 0x10000, v8")
    A("v_add_u32 v10, 0x10000, v6")
    A("s_waitcnt lgkmcnt(0)")
    A("s_barrier")
    A("ds_read_b64 v[30:31], v6 offset:16384")
    A(f"ds_read_b64 v[32:33], v6 offset:{16384+32768}")
    A("ds_read_b64 v[34:35], v10 offset:16384")
    A(f"ds_read_b64 v[36:37], v10 offset:{16384+32768}")
    for s in range(4):
        for i in range(4):
            r = O0 + 16*s + 4*i
            A(f"ds_read_b128 v[{r}:{r+3}], v{8 + s//2} offset:{32768*(s&1) + 1024*i}")
    A("s_waitcnt lgkmcnt(15)")
    A("v_max3_f32 v38, v30, v32, v34")
    A("v_max_f32 v38, v38, v36")
    for s in range(4):
        A(f"v_sub_f32 v{30+2*s}, v{30+2*s}, v38")
    for s in range(4):
        A(f"v_mul_f32 v{30+2*s}, s48, v{30+2*s}")
    for s in range(4):
        A(f"v_exp_f32 v{30+2*s}, v{30+2*s}")
    A("s_nop 0")
    A("v_mul_f32 v38, v30, v31")
    A("v_fmac_f32 v38, v32, v33")
    A("v_fmac_f32 v38, v34, v35")
    A("v_fmac_f32 v38, v36, v37")
    A("v_rcp_f32 v38, v38")
    A("s_lshl_b32 s47, s34, 6")
    A("v_add_u32 v3, s47, v3")
    for s in range(4):
        A(f"v_mul_f32 v{30+2*s}, v{30+2*s}, v38")
    A("s_waitcnt lgkmcnt(12)")
    for v in range(16):
        A(f"v_mul_f32 v{S0+v}, v{O0+v}, v30")
    for s in range(1, 4):
        A(f"s_waitcnt lgkmcnt({12-4*s})")
        for v in range(16):
            A(f"v_fmac_f32 v{S0+v}, v{O0+16*s+v}, v{30+2*s}")
    for i in range(8):
        A(f"v_cvt_pk_bf16_f32 v{P0+i}, v{S0+2*i}, v{S0+2*i+1}")
    A("s_nop 1")
    A(f"v_permlane32_swap_b32 v{P0}, v{P0+2}")
    A(f"v_permlane32_swap_b32 v{P0+1}, v{P0+3}")
    A(f"v_permlane32_swap_b32 v{P0+4}, v{P0+6}")
    A(f"v_permlane32_swap_b32 v{P0+5}, v{P0+7}")
    A(f"global_store_dwordx4 v3, v[{P0}:{P0+3}], s[14:15] {oflags}")
    A(f"global_store_dwordx4 v3, v[{P0+4}:{P0+7}], s[14:15] offset:32 {oflags}")
    if stamps:
        A("s_add_u32 s34, s34, 1")
        A("s_waitcnt vmcnt(0)")
        A("L_stamp:")
        A("s_memrealtime s[66:67]")
        A("s_mul_i32 s35, s2, 5"); A("s_add_u32 s35, s35, s34"); A("s_lshl_b32 s35, s35, 5")
        A("s_waitcnt lgkmcnt(0)")
        A("v_mov_b32 v12, s60"); A("v_mov_b32 v13, s61"); A("v_mov_b32 v14, s66"); A("v_mov_b32 v15, s67")
        A("v_mov_b32 v20, s62"); A("v_mov_b32 v21, s63"); A("v_mov_b32 v22, s64"); A("v_mov_b32 v23, s65")
        A("v_mov_b32 v16, s35")
        A("v_cmp_eq_u32 vcc, 0, v0")
        A("s_and_saveexec_b64 s[46:47], vcc")
        if dbg:
            A("v_not_b32 v12, v12")
            A("v_mov_b32 v16, 0")
            A("s_lshl_b32 s33, s33, 2")
            A("v_mov_b32 v17, s33")
            A("global_atomic_umax v16, v12, s[58:59]")
            A("global_atomic_umax v16, v14, s[58:59] offset:4")
            A("global_atomic_umax v17, v14, s[58:59] offset:32")
            A("s_cmp_eq_u32 s34, 0")
            A("s_cbranch_scc0 L_nodbg2")
            A("global_atomic_umax v16, v20, s[58:59] offset:8")
            A("global_atomic_umax v16, v22, s[58:59] offset:12")
            A("v_not_b32 v14, v14")
            A("global_atomic_umax v16, v14, s[58:59] offset:16")
            A("v_not_b32 v12, v12")
            A("global_atomic_umax v16, v12, s[58:59] offset:20")
            A("L_nodbg2:")
            A("s_cmp_eq_u32 s34, 1")
            A("s_cbranch_scc0 L_nodbg3")
            A("global_atomic_umax v16, v20, s[58:59] offset:24")
            A("L_nodbg3:")
        else:
            A("global_store_dwordx4 v16, v[12:15], s[58:59]")
            A("global_store_dwordx4 v16, v[20:23], s[58:59] offset:16")
        A("s_waitcnt vmcnt(0)")
    A("L_end:")
    A("s_endpgm")
    A('.section .rodata,"a"')
    A(".p2align 6")
    A(f".amdhsa_kernel {NAME}_kernel")
    A("  .amdhsa_next_free_vgpr 192")
    A("  .amdhsa_next_free_sgpr 72")
    A("  .amdhsa_accum_offset 192")
    A("  .amdhsa_group_segment_fixed_size 0")
    A("  .amdhsa_kernarg_size 64")
    A("  .amdhsa_user_sgpr_count 2")
    A("  .amdhsa_user_sgpr_kernarg_segment_ptr 1")
    A("  .amdhsa_system_sgpr_workgroup_id_x 1")
    A(".end_amdhsa_kernel")
    return "\n".join(o) + "\n"

if __name__ == "__main__":
    import json
    out = sys.argv[1]
    kw = {}
    for a in sys.argv[2:]:
        k, v = a.split("=", 1)
        try: v = json.loads(v)
        except Exception: pass
        kw[k] = v
    open(out, "w").write(gen(**kw))
```

```python
import sys
NAME = "standalone__paged_block_table_kv_pagedattention__sampling"
def wrap(src, out, field, waves, op, nw=5, mult=10, nwg=256):
    s = open(src).read()
    import re
    m = re.search(r"; @launch grid=\((\d+),1,1\) block=\((\d+),1,1\) lds=(\d+)", s)
    L = m.group(0)
    M = f"; @launch kernel={NAME}_kernel grid=({m.group(1)},1,1) block=({m.group(2)},1,1) lds={m.group(3)}"
    D = "; @launch kernel=diag_kernel grid=(1,1,1) block=(64,1,1) lds=0"
    s = s.replace(L, M + "\n" + D)
    o = []
    A = o.append
    A(".text"); A(".globl diag_kernel"); A(".p2align 8"); A(".type diag_kernel,@function"); A("diag_kernel:")
    A("s_cmp_lg_u32 s2, 0"); A("s_cbranch_scc1 D_end")
    A("s_memrealtime s[20:21]")
    A("s_load_dwordx2 s[4:5], s[0:1], 56")
    A("s_waitcnt lgkmcnt(0)")
    A("s_sub_u32 s22, s20, 1000000")
    A(f"v_mul_u32_u24 v1, {nw*32}, v0")
    A("v_mov_b32 v10, -1")
    A("v_mov_b32 v11, " + ("0" if op in ("max","sum") else "-1"))
    for k in range(nwg//64):
        for w in range(nw):
            A(f"v_add_u32 v2, {(k*64*nw + w)*32}, v1")
            A("global_load_dword v3, v2, s[4:5]")
            A(f"global_load_dword v4, v2, s[4:5] offset:{field*8}")
            A("s_waitcnt vmcnt(0)")
            A("v_subrev_u32 v3, s22, v3")
            A("v_subrev_u32 v4, s22, v4")
            A("v_min_u32 v10, v10, v3")
            if w in waves:
                A({"max":"v_max_u32","min":"v_min_u32","sum":"v_add_u32"}[op] + " v11, v11, v4")
    A("s_mov_b32 s10, -1"); A("s_mov_b32 s11, " + ("0" if op in ("max","sum") else "-1"))
    for l in range(64):
        A(f"v_readlane_b32 s12, v10, {l}"); A(f"v_readlane_b32 s13, v11, {l}"); A("s_nop 1")
        A("s_min_u32 s10, s10, s12")
        A({"max":"s_max_u32","min":"s_min_u32","sum":"s_add_u32"}[op] + " s11, s11, s13")
    if op == "sum":
        n = nwg*len(waves); assert n & (n-1) == 0
        A(f"s_lshr_b32 s11, s11, {n.bit_length()-1}")
    if field == 9:
        pass
    A("s_sub_u32 s11, s11, s10")
    A("s_min_u32 s11, s11, 20000")
    A(f"s_mul_i32 s11, s11, {mult}")
    A("s_add_u32 s11, s11, 6000")
    A("D_spin:")
    A("s_memrealtime s[24:25]")
    A("s_waitcnt lgkmcnt(0)")
    A("s_sub_u32 s24, s24, s20")
    A("s_cmp_lt_u32 s24, s11")
    A("s_cbranch_scc1 D_spin")
    A("D_end:")
    A("s_endpgm")
    A('.section .rodata,"a"'); A(".p2align 6"); A(".amdhsa_kernel diag_kernel")
    for l in ["next_free_vgpr 16","next_free_sgpr 32","accum_offset 16","group_segment_fixed_size 0","kernarg_size 64","user_sgpr_count 2","user_sgpr_kernarg_segment_ptr 1","system_sgpr_workgroup_id_x 1"]:
        A("  .amdhsa_" + l)
    A(".end_amdhsa_kernel")
    open(out, "w").write(s + "\n".join(o) + "\n")
if __name__ == "__main__":
    src = sys.argv[1]
    wrap(src, "d_base.s", 0, [0], "min", mult=0)
    wrap(src, "d_span.s", 1, [0,1,2,3,4], "max")
    wrap(src, "d_ldend_min.s", 1, [0], "min")
    wrap(src, "d_ldend_avg.s", 1, [0], "sum")
    wrap(src, "d_bt_avg.s", 3, [0], "sum")
    wrap(src, "d_fb_avg.s", 2, [1], "sum")
```

```python
import sys, struct, math, json
NAME = "standalone__paged_block_table_kv_pagedattention__sampling"
KBYTES = 4100*32768
def f2u(x): return struct.unpack("<I", struct.pack("<f", x))[0]
HEADER = open("cdna_kernels/%s.s.ref" % NAME).read().split("; Override")[0]

PBUF = 131072
MBUF = PBUF + 16384
LBUF = MBUF + 2048
QBUF = LBUF + 1024
LDS_TOTAL = QBUF + 8192

def gen(flags="nt", nlo=8, nhi=34, alpha=22.0, bias=0.0, stamps=False, qflags="", oflags="",
        pf=True, pf_thr=1.05, pf_gain=2.0, pf_k=1, pf_flags="", n0=32, poison=False, hb_gain=0.0, hb_thr=0.95,
        slow_mul=1.0, stall=False, quad=0.0, space=3, codepf=0, qdma=True):
    o = []
    A = o.append
    NWV = 6 if pf else 5
    A(HEADER.rstrip())
    A(f"; @launch grid=(256,1,1) block=({64*NWV},1,1) lds={LDS_TOTAL}")
    A('.amdgcn_target "amdgcn-amd-amdhsa--gfx950"')
    A(".text")
    A(f".globl {NAME}_kernel")
    A(".p2align 8")
    A(f".type {NAME}_kernel,@function")
    A(f"{NAME}_kernel:")
    A("s_load_dwordx8 s[4:11], s[0:1], 0      ; q k v bt")
    A("s_load_dwordx4 s[12:15], s[0:1], 32")
    A("s_cmp_ge_u32 s2, 256")
    A("s_cbranch_scc1 L_end")
    if stamps:
        A("s_memrealtime s[60:61]")
        A("s_load_dwordx2 s[68:69], s[0:1], 56")
    A("s_lshr_b32 s32, s2, 3                  ; b")
    A("s_and_b32 s33, s2, 7                   ; h")
    A("v_lshrrev_b32 v1, 6, v0")
    A("v_and_b32 v0, 63, v0                   ; lane")
    A("v_readfirstlane_b32 s34, v1            ; wave")
    A("s_lshl_b32 s35, s32, 9")
    A("v_lshlrev_b32 v1, 3, v0")
    A("s_cmp_lg_u32 s34, 0")
    A("s_cbranch_scc1 L_notloader")

    A("s_setprio 3")
    A("v_add_u32 v1, s35, v1")
    A("v_and_b32 v6, 31, v0")
    A("v_lshlrev_b32 v6, 2, v6")
    A("s_lshl_b32 s35, s32, 2")
    A("v_lshrrev_b32 v4, 4, v0")
    A("v_and_b32 v5, 15, v0")
    A("v_lshlrev_b32 v16, 2, v4")
    A("v_xor_b32 v16, v5, v16")
    A("v_lshlrev_b32 v16, 4, v16")
    if qdma:
        A("v_lshl_add_u32 v12, v4, 8, v16")
        for j in range(1, 4):
            A(f"v_xor_b32 v{12+j}, {16*j}, v12")
        A("s_lshl_b32 s52, s2, 13")
        A("s_add_u32 s53, s52, 4096")
        A(f"s_mov_b32 s26, {32*32*8*128*2}")
        A("s_mov_b32 s27, 0x20000")
        A(f"s_mov_b32 m0, {QBUF}")
    A("s_waitcnt lgkmcnt(0)")
    A("global_load_dwordx2 v[2:3], v1, s[10:11]")
    A("global_load_dword v7, v6, s[12:13]")
    A("s_load_dword s37, s[12:13], s35")
    if stamps: A("s_memrealtime s[62:63]")
    if qdma:
        A("s_mov_b32 s24, s4"); A("s_mov_b32 s25, s5")
        for j in range(8):
            if j == 4:
                A("s_add_u32 m0, m0, 4096"); A("s_nop 0")
            A(f"buffer_load_dwordx4 v{12 + (j&3)}, s[24:27], s{52 + j//4} offen offset:{1024*(j&3)} {qflags} lds")
    for base in (16, 20):
        A(f"s_mov_b32 s{base}, s6"); A(f"s_mov_b32 s{base+1}, s7")
        A(f"s_mov_b32 s{base+2}, {KBYTES}"); A(f"s_mov_b32 s{base+3}, 0x20000")
    A("v_lshl_add_u32 v8, v4, 11, v16")
    for j in range(1, 4):
        A(f"v_xor_b32 v{8+j}, {16*j}, v8")
        A(f"v_add_u32 v{8+j}, {(8192-1024)*j}, v{8+j}")
    A("v_lshlrev_b32 v21, 5, v0")
    A("s_lshl_b32 s36, s33, 8                 ; h*256")
    A(f"s_mov_b32 s59, {KBYTES}")
    A("s_mov_b32 s42, 0")
    A("s_mov_b32 s56, 0                       ; pos")
    A("s_mov_b32 s54, 128")
    A("s_mov_b32 s49, 0")
    A("s_waitcnt lgkmcnt(0)")
    A("s_cmp_gt_i32 s37, 0")
    A("s_cselect_b32 s37, s37, 2048")
    A("s_min_i32 s37, s37, 2048               ; cl_eff")
    A("v_sub_u32 v21, s37, v21")
    A("s_add_u32 s38, s37, 31")
    A("s_lshr_b32 s38, s38, 5                 ; nt")
    A("v_med3_i32 v4, v21, 0, 16")
    A("v_subrev_u32 v21, 16, v21")
    A("v_med3_i32 v5, v21, 0, 16")
    A("v_lshlrev_b32 v4, 11, v4")
    A("v_lshlrev_b32 v5, 11, v5")
    A("s_sub_u32 s48, s38, 1")
    A("s_and_b32 s41, s48, 3")
    A("s_add_u32 s41, s41, 1")
    A("s_mov_b32 s55, s48                     ; vtop")
    A("s_sub_i32 s40, s48, s41")
    A("s_mov_b32 s50, s41")
    A("s_mov_b32 s58, s41                     ; vcnt")
    A("s_mov_b32 s43, s41                     ; E")
    A("s_cmp_ge_i32 s40, 0")
    A("s_cselect_b32 s44, 4, 0")
    A("s_mov_b32 s45, s41                     ; inc1")
    A("s_lshl_b32 s47, s38, 1")
    A("s_mov_b32 s46, s43")
    A(f"s_mov_b32 s39, {n0*256}")
    A(f"s_waitcnt vmcnt({8 if qdma else 0})")
    if stamps: A("s_memrealtime s[64:65]")
    A("v_lshlrev_b32 v2, 15, v2")
    A("v_lshlrev_b32 v3, 15, v3")
    A("v_add_u32 v4, v4, v2")
    A("v_add_u32 v5, v5, v3")
    A("v_min_u32 v4, s59, v4")
    A("v_min_u32 v5, s59, v5")
    A("v_add_u32 v2, s36, v2")
    A("v_add_u32 v3, s36, v3")
    if stall:
        A("s_waitcnt lgkmcnt(0)")
        A("s_mov_b32 s62, 0"); A("s_mov_b32 s63, 0"); A("s_mov_b32 s64, 0"); A("s_mov_b32 s65, 0")
    A(f"s_branch L_ld{n0}")
    Ns = list(range(nlo, nhi+1))
    assert n0 in Ns
    A("L_calcN:")
    A("v_mov_b32 v19, 2048")
    A("v_cmp_lt_i32 vcc, 0, v7")
    A("v_min_i32 v7, v7, v19")
    A("v_cvt_f32_u32 v22, s37")
    A("v_cndmask_b32 v7, v19, v7, vcc")
    A("s_and_b32 s39, s33, 3")
    A(f"s_mov_b32 s51, {hex(f2u(alpha*32*256))}")
    A("v_add_u32_dpp v20, v7, v7 row_shr:1 row_mask:0xf bank_mask:0xf bound_ctrl:0")
    A("s_cmp_eq_u32 s39, 1")
    A(f"s_cselect_b32 s51, {hex(f2u(alpha*32*256*slow_mul))}, s51")
    A("v_add_u32_dpp v20, v20, v20 row_shr:2 row_mask:0xf bank_mask:0xf bound_ctrl:0")
    A(f"s_cselect_b32 s39, 0, {hex(f2u(hb_gain*256))}")
    A("v_mul_f32 v23, s51, v22")
    A("v_add_u32_dpp v20, v20, v20 row_shr:4 row_mask:0xf bank_mask:0xf bound_ctrl:0")
    A("s_nop 1")
    A("v_add_u32_dpp v20, v20, v20 row_shr:8 row_mask:0xf bank_mask:0xf bound_ctrl:0")
    A("s_nop 1")
    A("v_add_u32_dpp v20, v20, v20 row_bcast:15 row_mask:0xa bank_mask:0xf")
    A("v_cvt_f32_u32 v20, v20")
    A("v_rcp_f32 v20, v20")
    A(f"v_mov_b32 v24, {hex(f2u(bias*256))}")
    A("v_fma_f32 v23, v20, v23, v24")
    A("v_mul_f32 v22, v22, v20")
    A(f"v_mov_b32 v24, {hex(f2u(hb_thr))}")
    A(f"s_mov_b32 s51, {hex(f2u(-32.0))}")
    A("v_fma_f32 v25, v22, s51, 1.0           ; 1 - x")
    A("v_fma_f32 v22, v22, s51, v24")
    A("v_min_f32 v25, 0, v25")
    A("v_max_f32 v22, 0, v22")
    A("v_mul_f32 v25, v25, v25")
    A("v_fma_f32 v23, v22, s39, v23")
    A(f"s_mov_b32 s51, {hex(f2u(quad*256))}")
    A("v_fma_f32 v23, v25, s51, v23")
    A("v_cvt_u32_f32 v23, v23")
    A("s_nop 0")
    A("v_readlane_b32 s39, v23, 31            ; N * 256")
    A("s_branch L_next2")
    A("L_next:")
    A("s_cmp_eq_u32 s56, 1")
    A("s_cbranch_scc1 L_calcN")
    A("L_next2:")
    A("s_add_u32 s56, s56, 1")
    A("s_cmp_lt_i32 s55, 0")
    A("s_cbranch_scc1 L_drain")
    A("s_and_b32 s49, s56, 3")
    A("s_lshl_b32 s49, s49, 15")
    A("s_bitcmp1_b32 s56, 0")
    A("s_cbranch_scc0 L_setV")
    A("s_cmp_ge_i32 s40, 0")
    A("s_cbranch_scc1 L_setK")
    A("s_cmp_eq_u32 s56, 1")
    A("s_cbranch_scc1 L_next2")
    A("L_setV:")
    A("s_mov_b32 s16, s8"); A("s_mov_b32 s17, s9"); A("s_mov_b32 s20, s8"); A("s_mov_b32 s21, s9")
    A("s_mov_b32 s48, s55")
    A("s_mov_b32 s50, s58")
    A("s_sub_i32 s55, s55, s58")
    A("s_mov_b32 s58, 4")
    A("s_branch L_disp")
    A("L_setK:")
    A("s_mov_b32 s16, s6"); A("s_mov_b32 s17, s7"); A("s_mov_b32 s20, s6"); A("s_mov_b32 s21, s7")
    A("s_mov_b32 s48, s40")
    A("s_mov_b32 s50, 4")
    A("s_sub_i32 s40, s40, 4")
    A("L_disp:")
    A("s_add_u32 s54, s54, s39")
    A("s_lshr_b32 s57, s54, 8")
    A("s_and_b32 s54, s54, 255")
    def dispatch(lst):
        if len(lst) == 1:
            A(f"s_branch L_ld{lst[0]}")
            return
        mid = len(lst)//2
        lab = f"L_disp{lst[mid]}_{lst[-1]}"
        A(f"s_cmp_ge_u32 s57, {lst[mid]}")
        if len(lst) - mid == 1:
            A(f"s_cbranch_scc1 L_ld{lst[mid]}")
            dispatch(lst[:mid])
        else:
            A(f"s_cbranch_scc1 {lab}")
            dispatch(lst[:mid])
            A(f"{lab}:")
            dispatch(lst[mid:])
    dispatch(Ns)
    for NN in Ns:
        q, p = (NN-1) // 8, (NN-1) % 8
        A(f"L_ld{NN}:")
        A("v_readlane_b32 s52, v2, s48")
        A("v_readlane_b32 s18, v4, s48")
        A("v_readlane_b32 s53, v3, s48")
        A("v_readlane_b32 s22, v5, s48")
        A("s_mov_b32 m0, s49")
        A("s_sub_u32 s48, s48, 1")
        A("s_add_u32 s49, s49, 8192")
        A(f"s_sub_i32 s51, s42, {q}")
        A("s_add_u32 s42, s42, 1")
        for j in range(8):
            if j == 4: A("s_add_u32 m0, m0, 4096")
            if j == p: A("s_cmp_lt_i32 s51, s46")
            A(f"s_waitcnt vmcnt({NN-1})")
            if j == p:
                A(f"s_cbranch_scc1 L_ld{NN}_np")
                if stall:
                    A("s_memtime s[70:71]"); A("s_waitcnt lgkmcnt(0)")
                A("s_barrier")
                if stall:
                    A("s_memtime s[72:73]"); A("s_waitcnt lgkmcnt(0)")
                    A("s_sub_u32 s72, s72, s70")
                    A("s_cmp_lt_u32 s43, 14")
                    A("s_cselect_b32 s70, s72, 0")
                    A("s_add_u32 s62, s62, s72")
                    A("s_add_u32 s64, s64, s70")
                A("s_add_u32 s43, s43, s44")
                A(f"s_add_u32 s51, s51, {space}")
                A("s_max_i32 s46, s43, s51")
                A("s_mov_b32 s44, s45")
                A("s_mov_b32 s45, 4")
                A(f"L_ld{NN}_np:")
            srd = 16 if j < 4 else 20
            A(f"buffer_load_dwordx4 v{8 + (j&3)}, s[{srd}:{srd+3}], s{52 + j//4} offen offset:{1024*(j&3)} {flags} lds")
        A("s_sub_u32 s50, s50, 1")
        A("s_cmp_lg_u32 s50, 0")
        A(f"s_cbranch_scc1 L_ld{NN}")
        A("s_branch L_next")
    A("L_drain:")
    A("s_sub_i32 s51, s47, s43                ; rem")
    for c in range(6, -1, -1):
        A(f"L_drain{c}:")
        A(f"s_cmp_lt_i32 s51, {c}")
        A(f"s_cbranch_scc1 L_drain{c}_n")
        A(f"s_waitcnt vmcnt({8*c})")
        A("s_barrier")
        A("s_sub_i32 s51, s51, s44")
        A("s_mov_b32 s44, s45")
        A("s_mov_b32 s45, 4")
        A(f"s_branch L_drain{c}")
        A(f"L_drain{c}_n:")
    if stamps:
        A("s_branch L_stamp")
    A("s_endpgm")

    A("L_notloader:")
    if pf:
        A("s_cmp_lt_u32 s34, 5")
        A("s_cbranch_scc1 L_consumer")
        if codepf:
            A("s_getpc_b64 s[28:29]")
            A("L_pcref:")
            A("v_lshlrev_b32 v20, 6, v0")
            A("s_add_u32 s28, s28, L_E-L_pcref")
            A("s_addc_u32 s29, s29, 0")
            A(f"v_min_u32 v20, L_end-L_E, v20")
            A("global_load_dword v21, v20, s[28:29]")
        A("s_and_b32 s35, s33, 3")
        A("s_cmp_eq_u32 s35, 1")
        A("s_cbranch_scc1 L_pf_exit")
        A("s_sub_u32 s36, s35, 1")
        A("s_max_i32 s36, s36, 0")
        A("s_and_b32 s37, s33, 4")
        A("s_add_u32 s37, s37, 1")
        A("s_lshl_b32 s37, s37, 8")
        A("v_and_b32 v6, 31, v0")
        A("v_lshrrev_b32 v9, 5, v0")
        A("v_lshlrev_b32 v9, 4, v9")
        A("v_xor_b32 v9, v9, v6")
        A("v_lshlrev_b32 v12, 2, v6")
        A("v_lshlrev_b32 v13, 2, v9")
        A("s_waitcnt lgkmcnt(0)")
        A("global_load_dword v7, v12, s[12:13]")
        A("global_load_dword v14, v13, s[12:13]")
        for base, p in ((16, 6), (24, 8)):
            A(f"s_mov_b32 s{base}, s{p}"); A(f"s_mov_b32 s{base+1}, s{p+1}")
            A(f"s_mov_b32 s{base+2}, {KBYTES}"); A(f"s_mov_b32 s{base+3}, 0x20000")
        A("v_lshrrev_b32 v8, 2, v0")
        A("v_lshlrev_b32 v8, 11, v8")
        A("v_and_b32 v10, 3, v0")
        A("v_lshl_add_u32 v8, v10, 6, v8          ; tok*2048 + (l&3)*64")
        A("v_mov_b32 v19, 2048")
        A("v_mov_b32 v10, 0")
        A("s_waitcnt vmcnt(0)")
        A("v_cmp_lt_i32 vcc, 0, v7")
        A("v_cmp_lt_i32 s[40:41], 0, v14")
        A("v_min_i32 v7, v7, v19")
        A("v_min_i32 v14, v14, v19")
        A("v_cndmask_b32 v7, v19, v7, vcc")
        A("v_cndmask_b32 v14, v19, v14, s[40:41]")
        A("v_lshl_add_u32 v11, v7, 5, v6")
        A("v_lshl_add_u32 v14, v14, 5, v9")
        A("v_add_u32_dpp v15, v7, v7 row_shr:1 row_mask:0xf bank_mask:0xf bound_ctrl:0")
        A("v_sub_u32 v12, v14, v11")
        for k in range(1, 16):
            A(f"v_sub_u32_dpp v{12 + (k&1)}, v14, v11 row_ror:{k} row_mask:0xf bank_mask:0xf")
            A(f"v_alignbit_b32 v10, v10, v{12 + ((k-1)&1)}, 31")
            if k in (2, 4, 6):
                A(f"v_add_u32_dpp v15, v15, v15 row_shr:{ {2:2,4:4,6:8}[k] } row_mask:0xf bank_mask:0xf bound_ctrl:0")
            if k == 8:
                A("v_add_u32_dpp v15, v15, v15 row_bcast:15 row_mask:0xa bank_mask:0xf")
        A("v_alignbit_b32 v10, v10, v13, 31")
        A("v_bcnt_u32_b32 v10, v10, 0")
        A("v_readlane_b32 s40, v15, 31")
        A("v_mov_b32 v12, v10")
        A("s_nop 1")
        A("v_permlane32_swap_b32 v10, v12")
        A("v_add_u32 v10, v10, v12                ; rank")
        A("v_cvt_f32_u32 v13, s40")
        A("v_readlane_b32 s41, v10, s32")
        A(f"v_mul_f32 v13, {hex(f2u(pf_gain*pf_thr/1024))}, v13")
        A("v_cvt_f32_u32 v12, v7")
        A("s_sub_u32 s41, 31, s41")
        A("v_cmp_eq_u32 vcc, s41, v10")
        A(f"v_mul_f32 v12, {hex(f2u(pf_gain/32))}, v12")
        A("v_sub_f32 v12, v12, v13")
        A("v_cvt_i32_f32 v12, v12")
        A("v_lshrrev_b32 v13, 5, v7")
        A("v_min_i32 v12, v12, v13")
        A("s_ff1_i32_b32 s41, vcc_lo")
        A("v_readlane_b32 s45, v12, s41")
        A("s_lshl_b32 s43, s41, 9")
        A("v_add_u32 v1, s43, v1")
        A("s_add_u32 s36, s36, 1")
        A("s_nop 0")
        A("s_sub_i32 s45, s45, s36")
        A("s_cmp_lt_i32 s45, 0")
        A("s_cbranch_scc1 L_pf_exit")
        A("global_load_dwordx2 v[2:3], v1, s[10:11]")
        A("s_barrier")
        A("s_barrier")
        A("s_waitcnt vmcnt(0)")
        A("v_lshlrev_b32 v2, 15, v2")
        A("v_lshlrev_b32 v3, 15, v3")
        A("v_add_u32 v2, s37, v2")
        A("v_add_u32 v3, s37, v3")
        A("s_nop 0")
        A("L_pf_loop:")
        A("v_readlane_b32 s52, v2, s45")
        A("v_readlane_b32 s53, v3, s45")
        A("s_sub_i32 s45, s45, 3")
        A("s_nop 3")
        if pf_k == 3:
            A(f"buffer_load_dword v20, v8, s[16:19], s52 offen {pf_flags}")
            A("s_waitcnt vmcnt(0)")
            A(f"buffer_load_dword v21, v8, s[16:19], s53 offen {pf_flags}")
            A("s_barrier")
            A(f"buffer_load_dword v22, v8, s[24:27], s52 offen {pf_flags}")
            A("s_waitcnt vmcnt(0)")
            A(f"buffer_load_dword v23, v8, s[24:27], s53 offen {pf_flags}")
        else:
            A(f"buffer_load_dword v20, v8, s[16:19], s52 offen {pf_flags}")
            A(f"buffer_load_dword v21, v8, s[16:19], s53 offen {pf_flags}")
            if pf_k == 2:
                A("s_waitcnt vmcnt(0)")
            elif pf_k == 1:
                A("s_barrier")
            A(f"buffer_load_dword v22, v8, s[24:27], s52 offen {pf_flags}")
            A(f"buffer_load_dword v23, v8, s[24:27], s53 offen {pf_flags}")
        A("s_cmp_lt_i32 s45, 0")
        A("s_cbranch_scc1 L_pf_exit")
        A("s_barrier")
        A("s_branch L_pf_loop")
        A("L_pf_exit:")
        A("s_endpgm")

    P0, S0, O0, Q0, F0, B0, X0, KA = 40, 48, 64, 80, 112, 144, 176, 16
    VA0, VA1, vM, vL = 24, 25, 28, 29
    vPW, vPR, vMW, vMR = 4, 5, 6, 7
    A("L_consumer:")
    A("s_sub_u32 s34, s34, 1                  ; cw")
    A("v_and_b32 v1, 31, v0")
    A("v_lshrrev_b32 v2, 5, v0                ; hf")
    A("s_lshl_b32 s35, s32, 16")
    A("s_lshl_b32 s36, s33, 13")
    A("s_add_u32 s35, s35, s36")
    A("v_lshlrev_b32 v3, 8, v1")
    A("v_lshl_add_u32 v3, v2, 4, v3")
    A("v_add_u32 v3, s35, v3")
    A("s_lshl_b32 s36, s32, 2")
    A("s_waitcnt lgkmcnt(0)")
    A("s_load_dword s37, s[12:13], s36")
    if not qdma:
        for kk in range(8):
            A(f"global_load_dwordx4 v[{Q0+4*kk}:{Q0+4*kk+3}], v3, s[4:5] offset:{32*kk} {qflags}")
    A("s_lshl_b32 s46, s34, 13                ; cw*8192")
    A("v_and_b32 v8, 3, v0")
    A("v_bfe_u32 v9, v0, 2, 2")
    A("v_lshl_add_u32 v10, v8, 2, v9          ; g")
    A("v_xor_b32 v10, v10, v2")
    A("v_lshlrev_b32 v10, 4, v10")
    A("v_lshl_add_u32 v10, v1, 8, v10")
    A(f"v_add_u32 v{KA}, s46, v10")
    if qdma:
        A(f"v_add_u32 v{S0}, {QBUF}, v10")
        for kk in range(1, 8):
            A(f"v_xor_b32 v{S0+kk}, {32*kk}, v{S0}")
    for kk in range(1, 8):
        A(f"v_xor_b32 v{KA+kk}, {32*kk}, v{KA}")
    A("v_lshl_add_u32 v10, v2, 2, v9")
    A("v_lshlrev_b32 v10, 8, v10")
    A("v_xor_b32 v11, s34, v9")
    A("v_lshl_add_u32 v10, v11, 6, v10")
    A("v_bfe_u32 v11, v0, 4, 1")
    A("v_bfe_u32 v12, v0, 1, 1")
    A("v_lshl_add_u32 v11, v11, 1, v12")
    A("v_xor_b32 v11, v11, v2")
    A("v_lshl_add_u32 v10, v11, 4, v10")
    A("v_and_b32 v11, 1, v0")
    A(f"v_lshl_add_u32 v{VA0}, v11, 3, v10")
    A(f"v_xor_b32 v{VA1}, 32, v{VA0}")
    A("v_lshlrev_b32 v10, 4, v0")
    A(f"v_add_u32 v{vPR}, {PBUF}, v10")
    A("s_lshl_b32 s47, s34, 11")
    A(f"v_add_u32 v{vPW}, s47, v{vPR}")
    A("v_lshlrev_b32 v11, 5, v1")
    A(f"v_add_u32 v{vMR}, {MBUF}, v11")
    A("s_lshl_b32 s47, s34, 3")
    A(f"v_lshl_add_u32 v{vMW}, v2, 2, v{vMR}")
    A(f"v_add_u32 v{vMW}, s47, v{vMW}")
    for i in range(16):
        A(f"v_mov_b32 v{O0+i}, 0")
    A(f"v_mov_b32 v{vM}, {hex(f2u(-1e30))}")
    A(f"v_mov_b32 v{vL}, 0")
    A("v_mov_b32 v15, 0xff800000")
    A("s_lshl_b32 s47, s34, 6")
    A("v_add_u32 v3, s47, v3")
    if poison:
        A("v_mov_b32 v32, -1"); A("v_mov_b32 v33, -1"); A("v_mov_b32 v34, -1"); A("v_mov_b32 v35, -1")
        A("v_add_u32 v11, s46, v10")
        A("v_add_u32 v11, 0x10000, v11")
        for i in range(8):
            A(f"ds_write_b128 v11, v[32:35] offset:{1024*i}")
    A("s_waitcnt lgkmcnt(0)")
    A(f"s_mov_b32 s48, {hex(f2u(128**-0.5*math.log2(math.e)))}")
    A("s_cmp_gt_i32 s37, 0")
    A("s_cselect_b32 s48, s48, 0")
    A("s_cselect_b32 s37, s37, 2048")
    A("s_min_i32 s37, s37, 2048")
    A("s_add_u32 s38, s37, 31")
    A("s_lshr_b32 s38, s38, 5                 ; nt")
    A("s_sub_u32 s40, s38, 1")
    A("s_and_b32 s41, s40, 3")
    A("s_add_u32 s41, s41, 1                  ; m")
    A("s_add_u32 s42, s38, 3")
    A("s_lshr_b32 s42, s42, 2")
    A("s_lshl_b32 s40, s40, 5")
    A("s_sub_u32 s40, s37, s40")
    A("s_cmp_eq_u32 s34, 0")
    A("s_cselect_b32 s40, s40, 64")
    A("s_cmp_lt_u32 s34, s41")
    A("s_cselect_b32 s40, s40, 0")
    A("v_lshlrev_b32 v14, 2, v2")
    A("v_sub_u32 v14, s40, v14                ; thr")
    A("s_cbranch_scc1 L_active")
    A("v_add_u32 v11, s46, v10")
    A("v_add_u32 v11, 0x10000, v11")
    for i in range(8):
        A(f"ds_write_b128 v11, v[{O0}:{O0+3}] offset:{1024*i}")
    A("L_active:")
    A("s_mov_b32 s43, 1")
    A("s_mov_b32 s44, 0x8000")
    A("s_mov_b32 s45, 0")
    A("s_waitcnt vmcnt(0) lgkmcnt(0)")
    A("s_barrier")
    if stamps:
        A("s_memrealtime s[62:63]")
        A("s_waitcnt lgkmcnt(0)")
    if qdma:
        for kk in range(8):
            A(f"ds_read_b128 v[{Q0+4*kk}:{Q0+4*kk+3}], v{S0+kk}")
    A("s_branch L_X")
    A("L_E:")
    A(f"v_max3_f32 v30, v{X0}, v{X0+1}, v{X0+2}")
    A(f"v_max3_f32 v31, v{X0+3}, v{X0+4}, v{X0+5}")
    A(f"v_max3_f32 v30, v30, v{X0+6}, v{X0+7}")
    A(f"v_max3_f32 v30, v30, v31, v{vM}        ; m_new")
    A(f"v_sub_f32 v31, v{vM}, v30")
    A("v_mul_f32 v32, s48, v30                ; mc")
    A("v_mul_f32 v31, s48, v31")
    A(f"v_mov_b32 v{vM}, v30")
    A("v_exp_f32 v34, v31                     ; alpha")
    for v in range(16):
        A(f"v_fma_f32 v{S0+v}, v{S0+v}, s48, -v32")
    for v in range(16):
        A(f"v_exp_f32 v{S0+v}, v{S0+v}")
    A(f"v_mul_f32 v{vL}, v{vL}, v34")
    for i in range(8):
        A(f"v_cvt_pk_bf16_f32 v{P0+i}, v{S0+2*i}, v{S0+2*i+1}")
    A(f"ds_write_b128 v{vPW}, v[{P0}:{P0+3}]")
    A(f"ds_write_b128 v{vPW}, v[{P0+4}:{P0+7}] offset:1024")
    A(f"v_add_f32 v30, v{S0}, v{S0+1}")
    A(f"v_add_f32 v31, v{S0+2}, v{S0+3}")
    for v in range(4, 16, 2):
        A(f"v_add_f32 v30, v30, v{S0+v}")
        A(f"v_add_f32 v31, v31, v{S0+v+1}")
    A("v_add_f32 v30, v30, v31")
    A(f"v_add_f32 v{vL}, v{vL}, v30")
    for i in range(0, 16, 2):
        A(f"v_pk_mul_f32 v[{O0+i}:{O0+i+1}], v[{O0+i}:{O0+i+1}], v[34:35] op_sel_hi:[1,0]")
    A(f"v_xor_b32 v{vPW}, 0x2000, v{vPW}")
    A("s_sub_u32 s42, s42, 1")
    A("s_cmp_eq_u32 s42, 0")
    A("s_cbranch_scc0 L_notlast")
    A(f"v_or_b32 v{vMW}, 0x400, v{vMW}")
    A(f"v_or_b32 v{vMR}, 0x400, v{vMR}")
    A(f"ds_write_b32 v{vMW}, v{vL} offset:1024")
    A(f"v_add_u32 v{vMR}, 1024, v{vMR}")
    A("s_branch L_B")
    A("L_notlast:")
    A("s_cmp_eq_u32 s45, 1")
    A("s_cbranch_scc1 L_X")
    A("s_waitcnt lgkmcnt(0)")
    A("s_barrier")
    A("s_add_u32 s45, s45, 1")
    A("L_X:")
    for kk in range(8):
        A(f"ds_read_b128 v[{F0+4*kk}:{F0+4*kk+3}], v{KA+kk}")
    for kk in range(8):
        A(f"s_waitcnt lgkmcnt({7-kk})")
        c = "0" if kk == 0 else f"v[{S0}:{S0+15}]"
        A(f"v_mfma_f32_32x32x16_bf16 v[{S0}:{S0+15}], v[{F0+4*kk}:{F0+4*kk+3}], v[{Q0+4*kk}:{Q0+4*kk+3}], {c}")
    for i in range(8): A(f"v_xor_b32 v{KA+i}, s44, v{KA+i}")
    A("s_mov_b32 s44, 0x10000")
    A("s_cmp_eq_u32 s43, 0")
    A("s_nop 1")
    A("s_cbranch_scc1 L_nomask")
    for v in range(16):
        A(f"v_cmp_lt_i32 vcc, {8*(v>>2)+(v&3)}, v14")
        A("s_nop 1")
        A(f"v_cndmask_b32 v{S0+v}, v15, v{S0+v}, vcc")
    A("L_nomask:")
    A(f"v_max3_f32 v30, v{S0}, v{S0+1}, v{S0+2}")
    A(f"v_max3_f32 v31, v{S0+3}, v{S0+4}, v{S0+5}")
    A(f"v_max3_f32 v30, v30, v{S0+6}, v{S0+7}")
    A(f"v_max3_f32 v31, v31, v{S0+8}, v{S0+9}")
    A(f"v_max3_f32 v30, v30, v{S0+10}, v{S0+11}")
    A(f"v_max3_f32 v31, v31, v{S0+12}, v{S0+13}")
    A(f"v_max3_f32 v30, v30, v{S0+14}, v{S0+15}")
    A("v_max_f32 v30, v30, v31")
    A(f"ds_write_b32 v{vMW}, v30")
    A(f"v_xor_b32 v{vMW}, 0x400, v{vMW}")
    A("L_B:")
    A("s_add_u32 s45, s45, 1")
    A("s_and_b32 s47, s45, 3")
    A("s_lshl_b32 s47, s47, 15")
    A(f"v_add_u32 v26, s47, v{VA0}")
    A(f"v_add_u32 v27, s47, v{VA1}")
    A("s_cmp_eq_u32 s43, 0")
    A("s_mov_b32 s43, 0")
    A("s_waitcnt lgkmcnt(0)")
    A("s_barrier")
    A("s_cbranch_scc1 L_PV")
    A(f"ds_read_b128 v[{X0}:{X0+3}], v{vMR}")
    A(f"ds_read_b128 v[{X0+4}:{X0+7}], v{vMR} offset:16")
    A(f"v_xor_b32 v{vMR}, 0x400, v{vMR}")
    A("s_waitcnt lgkmcnt(0)")
    A("s_branch L_E")
    A("L_PV:")
    def rd(i):
        s, s2 = i >> 1, i & 1
        r = F0 + 4*i
        A(f"ds_read_b128 v[{B0+4*i}:{B0+4*i+3}], v{vPR} offset:{2048*s + 1024*s2}")
        A(f"ds_read_b64_tr_b16 v[{r}:{r+1}], v26 offset:{8192*s + 4096*s2}")
        A(f"ds_read_b64_tr_b16 v[{r+2}:{r+3}], v27 offset:{8192*s + 4096*s2 + 2048}")
    AHEAD = 4
    for i in range(AHEAD): rd(i)
    issued = 3*AHEAD
    for i in range(8):
        if i + AHEAD < 8:
            rd(i + AHEAD); issued += 3
        elif i + AHEAD == 8:
            A(f"ds_read_b128 v[{X0}:{X0+3}], v{vMR}")
            A(f"ds_read_b128 v[{X0+4}:{X0+7}], v{vMR} offset:16")
            issued += 2
        A(f"s_waitcnt lgkmcnt({issued - 3*(i+1)})")
        r = F0 + 4*i
        A(f"v_mfma_f32_32x32x16_bf16 v[{O0}:{O0+15}], v[{r}:{r+3}], v[{B0+4*i}:{B0+4*i+3}], v[{O0}:{O0+15}]")
    A(f"v_xor_b32 v{vPR}, 0x2000, v{vPR}")
    A(f"v_xor_b32 v{vMR}, 0x400, v{vMR}")
    A("s_cmp_lg_u32 s42, 0")
    A("s_waitcnt lgkmcnt(0)")
    A("s_cbranch_scc1 L_E")
    A(f"v_add_f32 v30, v{X0}, v{X0+1}")
    A(f"v_add_f32 v31, v{X0+2}, v{X0+3}")
    A(f"v_add_f32 v32, v{X0+4}, v{X0+5}")
    A(f"v_add_f32 v33, v{X0+6}, v{X0+7}")
    A("v_add_f32 v30, v30, v31")
    A("v_add_f32 v32, v32, v33")
    A("v_add_f32 v30, v30, v32")
    A("v_rcp_f32 v34, v30")
    if stamps:
        A("s_memrealtime s[64:65]")
    A("s_nop 1")
    for i in range(0, 16, 2):
        A(f"v_pk_mul_f32 v[{O0+i}:{O0+i+1}], v[{O0+i}:{O0+i+1}], v[34:35] op_sel_hi:[1,0]")
    for i in range(8):
        A(f"v_cvt_pk_bf16_f32 v{P0+i}, v{O0+2*i}, v{O0+2*i+1}")
    A(f"v_permlane32_swap_b32 v{P0}, v{P0+2}")
    A(f"v_permlane32_swap_b32 v{P0+1}, v{P0+3}")
    A(f"global_store_dwordx4 v3, v[{P0}:{P0+3}], s[14:15] {oflags}")
    A(f"v_permlane32_swap_b32 v{P0+4}, v{P0+6}")
    A(f"v_permlane32_swap_b32 v{P0+5}, v{P0+7}")
    A(f"global_store_dwordx4 v3, v[{P0+4}:{P0+7}], s[14:15] offset:32 {oflags}")
    if stamps:
        A("s_add_u32 s34, s34, 1")
        A("s_waitcnt vmcnt(0)")
        A("L_stamp:")
        A("s_memrealtime s[66:67]")
        A("s_mul_i32 s35, s2, 5"); A("s_add_u32 s35, s35, s34"); A("s_lshl_b32 s35, s35, 5")
        A("s_waitcnt lgkmcnt(0)")
        A("v_mov_b32 v12, s60"); A("v_mov_b32 v13, s61"); A("v_mov_b32 v14, s66"); A("v_mov_b32 v15, s67")
        A("v_mov_b32 v20, s62"); A("v_mov_b32 v21, s63"); A("v_mov_b32 v22, s64"); A("v_mov_b32 v23, s65")
        A("v_mov_b32 v16, s35")
        A("v_cmp_eq_u32 vcc, 0, v0")
        A("s_and_saveexec_b64 s[46:47], vcc")
        A("global_store_dwordx4 v16, v[12:15], s[68:69]")
        A("global_store_dwordx4 v16, v[20:23], s[68:69] offset:16")
        A("s_waitcnt vmcnt(0)")
    A("L_end:")
    A("s_endpgm")
    A('.section .rodata,"a"')
    A(".p2align 6")
    A(f".amdhsa_kernel {NAME}_kernel")
    A("  .amdhsa_next_free_vgpr 184")
    A("  .amdhsa_next_free_sgpr 80")
    A("  .amdhsa_accum_offset 184")
    A("  .amdhsa_group_segment_fixed_size 0")
    A("  .amdhsa_kernarg_size 64")
    A("  .amdhsa_user_sgpr_count 2")
    A("  .amdhsa_user_sgpr_kernarg_segment_ptr 1")
    A("  .amdhsa_system_sgpr_workgroup_id_x 1")
    A(".end_amdhsa_kernel")
    return "\n".join(o) + "\n"

if __name__ == "__main__":
    out = sys.argv[1]
    kw = {}
    for a in sys.argv[2:]:
        k, v = a.split("=", 1)
        try: v = json.loads(v)
        except Exception: pass
        kw[k] = v
    open(out, "w").write(gen(**kw))
```

```python
import sys
NAME = "standalone__paged_block_table_kv_pagedattention__sampling"
def wrap(src, out, field, waves, op, nw=5, mult=10, nwg=256, gap=False):
    s = open(src).read()
    import re
    m = re.search(r"; @launch grid=\((\d+),1,1\) block=\((\d+),1,1\) lds=(\d+)", s)
    L = m.group(0)
    M = f"; @launch kernel={NAME}_kernel grid=({m.group(1)},1,1) block=({m.group(2)},1,1) lds={m.group(3)}"
    D = "; @launch kernel=diag_kernel grid=(1,1,1) block=(64,1,1) lds=0"
    s = s.replace(L, M + "\n" + D)
    o = []
    A = o.append
    A(".text"); A(".globl diag_kernel"); A(".p2align 8"); A(".type diag_kernel,@function"); A("diag_kernel:")
    A("s_cmp_lg_u32 s2, 0"); A("s_cbranch_scc1 D_end")
    A("s_memrealtime s[20:21]")
    A("s_load_dwordx2 s[4:5], s[0:1], 56")
    A("s_waitcnt lgkmcnt(0)")
    A("s_sub_u32 s22, s20, 1000000")
    A(f"v_mul_u32_u24 v1, {nw*32}, v0")
    A("v_mov_b32 v10, -1")
    A("v_mov_b32 v11, " + ("0" if op in ("max","sum") else "-1"))
    for k in range(nwg//64):
        for w in range(nw):
            A(f"v_add_u32 v2, {(k*64*nw + w)*32}, v1")
            A("global_load_dword v3, v2, s[4:5]")
            A(f"global_load_dword v4, v2, s[4:5] offset:{field*8}")
            A("s_waitcnt vmcnt(0)")
            A("v_subrev_u32 v3, s22, v3")
            A("v_subrev_u32 v4, s22, v4")
            A("v_min_u32 v10, v10, v3")
            if w in waves:
                A({"max":"v_max_u32","min":"v_min_u32","sum":"v_add_u32"}[op] + " v11, v11, v4")
    A("s_mov_b32 s10, -1"); A("s_mov_b32 s11, " + ("0" if op in ("max","sum") else "-1"))
    for l in range(64):
        A(f"v_readlane_b32 s12, v10, {l}"); A(f"v_readlane_b32 s13, v11, {l}"); A("s_nop 1")
        A("s_min_u32 s10, s10, s12")
        A({"max":"s_max_u32","min":"s_min_u32","sum":"s_add_u32"}[op] + " s11, s11, s13")
    if op == "sum":
        n = nwg*len(waves); assert n & (n-1) == 0
        A(f"s_lshr_b32 s11, s11, {n.bit_length()-1}")
    if field == 9:
        pass
    if gap: A("s_sub_u32 s11, 1000000, s11")
    else: A("s_sub_u32 s11, s11, s10")
    A("s_min_u32 s11, s11, 20000")
    A(f"s_mul_i32 s11, s11, {mult}")
    A("s_add_u32 s11, s11, 6000")
    A("D_spin:")
    A("s_memrealtime s[24:25]")
    A("s_waitcnt lgkmcnt(0)")
    A("s_sub_u32 s24, s24, s20")
    A("s_cmp_lt_u32 s24, s11")
    A("s_cbranch_scc1 D_spin")
    A("D_end:")
    A("s_endpgm")
    A('.section .rodata,"a"'); A(".p2align 6"); A(".amdhsa_kernel diag_kernel")
    for l in ["next_free_vgpr 16","next_free_sgpr 32","accum_offset 16","group_segment_fixed_size 0","kernarg_size 64","user_sgpr_count 2","user_sgpr_kernarg_segment_ptr 1","system_sgpr_workgroup_id_x 1"]:
        A("  .amdhsa_" + l)
    A(".end_amdhsa_kernel")
    open(out, "w").write(s + "\n".join(o) + "\n")
if __name__ == "__main__":
    for src in sys.argv[1:]:
        b = src[:-2]
        wrap(src, f"d_{b}_base.s", 0, [0], "min", mult=0)
        wrap(src, f"d_{b}_span.s", 1, [0,1,2,3,4], "max")
        wrap(src, f"d_{b}_gap.s", 1, [0,1,2,3,4], "max", gap=True, mult=20)
```

```python
import sys, struct, math, json
NAME = "standalone__paged_block_table_kv_pagedattention__sampling"
KBYTES = 4100*32768
def f2u(x): return struct.unpack("<I", struct.pack("<f", x))[0]
HEADER = open("cdna_kernels/%s.s.ref" % NAME).read().split("; Override")[0]

PBUF = 131072
MBUF = PBUF + 16384
LBUF = MBUF + 2048
QBUF = LBUF + 1024
NBUF = QBUF + 8192
LDS_TOTAL = NBUF + 256

def gen(flags="nt", nlo=8, nhi=34, alpha=22.0, bias=0.0, stamps=False, qflags="", oflags="",
        pf=True, pf_thr=1.05, pf_gain=2.0, pf_k=1, pf_flags="", n0=32, poison=False, hb_gain=0.0, hb_thr=0.95,
        slow_mul=1.0, stall=False, quad=0.0, space=3, codepf=0, qdma=True,
        fb=True, fb_g=1.0, fb_dmin=0.18, fb_lo=0.8, fb_hi=1.25, fb_start=0.3, pub_start=0.2, pub_off=3.0, fb_full=False, fb_every=1, pub_every=1, par=0.0, hbt=0.0, skew=0.0, pollf="nt", hitw=0.55, rot=1):
    o = []
    A = o.append
    NWV = 6 if pf else 5
    A(HEADER.rstrip())
    A(f"; @launch grid=(256,1,1) block=({64*NWV},1,1) lds={LDS_TOTAL}")
    A('.amdgcn_target "amdgcn-amd-amdhsa--gfx950"')
    A(".text")
    A(f".globl {NAME}_kernel")
    A(".p2align 8")
    A(f".type {NAME}_kernel,@function")
    A(f"{NAME}_kernel:")
    A("s_load_dwordx8 s[4:11], s[0:1], 0      ; q k v bt")
    A("s_load_dwordx4 s[12:15], s[0:1], 32")
    A("s_load_dwordx2 s[30:31], s[0:1], 48    ; debug")
    A("s_cmp_ge_u32 s2, 256")
    A("s_cbranch_scc1 L_end")
    if stamps:
        A("s_memrealtime s[60:61]")
        A("s_load_dwordx2 s[68:69], s[0:1], 56")
    A("s_lshr_b32 s32, s2, 3                  ; b")
    if rot:
        A("s_add_u32 s33, s2, s32")
        A("s_and_b32 s33, s33, 7                  ; h")
    else:
        A("s_and_b32 s33, s2, 7                   ; h")
    A("v_lshrrev_b32 v1, 6, v0")
    A("v_and_b32 v0, 63, v0                   ; lane")
    A("v_readfirstlane_b32 s34, v1            ; wave")
    A("s_lshl_b32 s35, s32, 9")
    A("v_lshlrev_b32 v1, 3, v0")
    A("s_cmp_lg_u32 s34, 0")
    A("s_cbranch_scc1 L_notloader")

    A("s_setprio 3")
    A("v_add_u32 v1, s35, v1")
    A("s_lshl_b32 s35, s32, 2")
    A("v_lshrrev_b32 v4, 4, v0")
    A("v_and_b32 v5, 15, v0")
    A("v_lshlrev_b32 v16, 2, v4")
    A("v_xor_b32 v16, v5, v16")
    A("v_lshlrev_b32 v16, 4, v16")
    if qdma:
        A("v_lshl_add_u32 v12, v4, 8, v16")
        for j in range(1, 4):
            A(f"v_xor_b32 v{12+j}, {16*j}, v12")
        A("s_lshl_b32 s52, s32, 3")
        A("s_add_u32 s52, s52, s33")
        A("s_lshl_b32 s52, s52, 13")
        A("s_add_u32 s53, s52, 4096")
        A(f"s_mov_b32 s26, {32*32*8*128*2}")
        A("s_mov_b32 s27, 0x20000")
        A(f"s_mov_b32 m0, {QBUF}")
    A("s_waitcnt lgkmcnt(0)")
    A("global_load_dwordx2 v[2:3], v1, s[10:11]")
    A("s_load_dword s37, s[12:13], s35")
    if stamps: A("s_memrealtime s[62:63]")
    if qdma:
        A("s_mov_b32 s24, s4"); A("s_mov_b32 s25, s5")
        for j in range(8):
            if j == 4:
                A("s_add_u32 m0, m0, 4096"); A("s_nop 0")
            A(f"buffer_load_dwordx4 v{12 + (j&3)}, s[24:27], s{52 + j//4} offen offset:{1024*(j&3)} {qflags} lds")
    for base in (16, 20):
        A(f"s_mov_b32 s{base}, s6"); A(f"s_mov_b32 s{base+1}, s7")
        A(f"s_mov_b32 s{base+2}, {KBYTES}"); A(f"s_mov_b32 s{base+3}, 0x20000")
    A("v_lshl_add_u32 v8, v4, 11, v16")
    for j in range(1, 4):
        A(f"v_xor_b32 v{8+j}, {16*j}, v8")
        A(f"v_add_u32 v{8+j}, {(8192-1024)*j}, v{8+j}")
    A("v_lshlrev_b32 v21, 5, v0")
    A("s_lshl_b32 s36, s33, 8                 ; h*256")
    A(f"s_mov_b32 s59, {KBYTES}")
    A("s_mov_b32 s42, 0")
    A("s_mov_b32 s56, 0                       ; pos")
    A("s_mov_b32 s54, 128")
    A("s_mov_b32 s49, 0")
    A("s_waitcnt lgkmcnt(0)")
    A("s_cmp_gt_i32 s37, 0")
    A("s_cselect_b32 s37, s37, 2048")
    A("s_min_i32 s37, s37, 2048               ; cl_eff")
    A("v_sub_u32 v21, s37, v21")
    A("s_add_u32 s38, s37, 31")
    A("s_lshr_b32 s38, s38, 5                 ; nt")
    A("v_med3_i32 v4, v21, 0, 16")
    A("v_subrev_u32 v21, 16, v21")
    A("v_med3_i32 v5, v21, 0, 16")
    A("v_lshlrev_b32 v4, 11, v4")
    A("v_lshlrev_b32 v5, 11, v5")
    A("s_sub_u32 s48, s38, 1")
    A("s_and_b32 s41, s48, 3")
    A("s_add_u32 s41, s41, 1")
    A("s_mov_b32 s55, s48                     ; vtop")
    A("s_sub_i32 s40, s48, s41")
    A("s_mov_b32 s50, s41")
    A("s_mov_b32 s58, s41                     ; vcnt")
    A("s_mov_b32 s43, s41                     ; E")
    A("s_cmp_ge_i32 s40, 0")
    A("s_cselect_b32 s44, 4, 0")
    A("s_mov_b32 s45, s41                     ; inc1")
    A("s_lshl_b32 s47, s38, 1")
    A("s_mov_b32 s46, s43")
    A(f"s_mov_b32 s39, {n0*256}")
    A(f"v_mov_b32 v32, {NBUF}")
    A(f"v_mov_b32 v33, {n0*256}")
    A("ds_write_b32 v32, v33")
    A(f"s_waitcnt vmcnt({8 if qdma else 0})")
    if stamps: A("s_memrealtime s[64:65]")
    A("v_lshlrev_b32 v2, 15, v2")
    A("v_lshlrev_b32 v3, 15, v3")
    A("v_add_u32 v4, v4, v2")
    A("v_add_u32 v5, v5, v3")
    A("v_min_u32 v4, s59, v4")
    A("v_min_u32 v5, s59, v5")
    A("v_add_u32 v2, s36, v2")
    A("v_add_u32 v3, s36, v3")
    if stall:
        A("s_waitcnt lgkmcnt(0)")
        A("s_mov_b32 s62, 0"); A("s_mov_b32 s63, 0"); A("s_mov_b32 s64, 0"); A("s_mov_b32 s65, 0")
    A(f"s_branch L_ld{n0}")
    Ns = list(range(nlo, nhi+1))
    assert n0 in Ns
    A("L_next:")
    A("s_waitcnt lgkmcnt(0)")
    A("v_readfirstlane_b32 s39, v33")
    A("L_next2:")
    A("s_add_u32 s56, s56, 1")
    A("s_cmp_lt_i32 s55, 0")
    A("s_cbranch_scc1 L_drain")
    A("s_and_b32 s49, s56, 3")
    A("s_lshl_b32 s49, s49, 15")
    A("s_bitcmp1_b32 s56, 0")
    A("s_cbranch_scc0 L_setV")
    A("s_cmp_ge_i32 s40, 0")
    A("s_cbranch_scc1 L_setK")
    A("s_cmp_eq_u32 s56, 1")
    A("s_cbranch_scc1 L_next2")
    A("L_setV:")
    A("s_mov_b32 s16, s8"); A("s_mov_b32 s17, s9"); A("s_mov_b32 s20, s8"); A("s_mov_b32 s21, s9")
    A("s_mov_b32 s48, s55")
    A("s_mov_b32 s50, s58")
    A("s_sub_i32 s55, s55, s58")
    A("s_mov_b32 s58, 4")
    A("s_branch L_disp")
    A("L_setK:")
    A("s_mov_b32 s16, s6"); A("s_mov_b32 s17, s7"); A("s_mov_b32 s20, s6"); A("s_mov_b32 s21, s7")
    A("s_mov_b32 s48, s40")
    A("s_mov_b32 s50, 4")
    A("s_sub_i32 s40, s40, 4")
    A("L_disp:")
    A("s_add_u32 s54, s54, s39")
    A("s_lshr_b32 s57, s54, 8")
    A("s_and_b32 s54, s54, 255")
    def dispatch(lst):
        if len(lst) == 1:
            A(f"s_branch L_ld{lst[0]}")
            return
        mid = len(lst)//2
        lab = f"L_disp{lst[mid]}_{lst[-1]}"
        A(f"s_cmp_ge_u32 s57, {lst[mid]}")
        if len(lst) - mid == 1:
            A(f"s_cbranch_scc1 L_ld{lst[mid]}")
            dispatch(lst[:mid])
        else:
            A(f"s_cbranch_scc1 {lab}")
            dispatch(lst[:mid])
            A(f"{lab}:")
            dispatch(lst[mid:])
    dispatch(Ns)
    for NN in Ns:
        q, p = (NN-1) // 8, (NN-1) % 8
        A(f"L_ld{NN}:")
        A("v_readlane_b32 s52, v2, s48")
        A("v_readlane_b32 s18, v4, s48")
        A("v_readlane_b32 s53, v3, s48")
        A("v_readlane_b32 s22, v5, s48")
        A("s_mov_b32 m0, s49")
        A("s_sub_u32 s48, s48, 1")
        A("s_add_u32 s49, s49, 8192")
        A(f"s_sub_i32 s51, s42, {q}")
        A("s_add_u32 s42, s42, 1")
        for j in range(8):
            if j == 4: A("s_add_u32 m0, m0, 4096")
            if j == 6: A("ds_read_b32 v33, v32")
            if j == p: A("s_cmp_lt_i32 s51, s46")
            A(f"s_waitcnt vmcnt({NN-1})")
            if j == p:
                A(f"s_cbranch_scc1 L_ld{NN}_np")
                if stall:
                    A("s_memtime s[70:71]"); A("s_waitcnt lgkmcnt(0)")
                A("s_barrier")
                if stall:
                    A("s_memtime s[72:73]"); A("s_waitcnt lgkmcnt(0)")
                    A("s_sub_u32 s72, s72, s70")
                    A("s_cmp_lt_u32 s43, 14")
                    A("s_cselect_b32 s70, s72, 0")
                    A("s_add_u32 s62, s62, s72")
                    A("s_add_u32 s64, s64, s70")
                A("s_add_u32 s43, s43, s44")
                A(f"s_add_u32 s51, s51, {space}")
                A("s_max_i32 s46, s43, s51")
                A("s_mov_b32 s44, s45")
                A("s_mov_b32 s45, 4")
                A(f"L_ld{NN}_np:")
            srd = 16 if j < 4 else 20
            A(f"buffer_load_dwordx4 v{8 + (j&3)}, s[{srd}:{srd+3}], s{52 + j//4} offen offset:{1024*(j&3)} {flags} lds")
        A("s_sub_u32 s50, s50, 1")
        A("s_cmp_lg_u32 s50, 0")
        A(f"s_cbranch_scc1 L_ld{NN}")
        A("s_branch L_next")
    A("L_drain:")
    A("s_sub_i32 s51, s47, s43                ; rem")
    for c in range(6, -1, -1):
        A(f"L_drain{c}:")
        A(f"s_cmp_lt_i32 s51, {c}")
        A(f"s_cbranch_scc1 L_drain{c}_n")
        A(f"s_waitcnt vmcnt({8*c})")
        A("s_barrier")
        A("s_sub_i32 s51, s51, s44")
        A("s_mov_b32 s44, s45")
        A("s_mov_b32 s45, 4")
        A(f"s_branch L_drain{c}")
        A(f"L_drain{c}_n:")
    if stamps:
        A("s_branch L_stamp")
    A("s_endpgm")

    A("L_notloader:")
    if pf:
        A("s_cmp_lt_u32 s34, 5")
        A("s_cbranch_scc1 L_consumer")
        if codepf:
            A("s_getpc_b64 s[28:29]")
            A("L_pcref:")
            A("v_lshlrev_b32 v20, 6, v0")
            A("s_add_u32 s28, s28, L_E-L_pcref")
            A("s_addc_u32 s29, s29, 0")
            A(f"v_min_u32 v20, L_end-L_E, v20")
            A("global_load_dword v21, v20, s[28:29]")
        A("s_and_b32 s35, s33, 3")
        A("v_and_b32 v6, 31, v0")
        A("v_lshrrev_b32 v9, 5, v0")
        A("v_lshlrev_b32 v9, 4, v9")
        A("v_xor_b32 v9, v9, v6")
        A("v_lshlrev_b32 v12, 2, v6")
        A("v_lshlrev_b32 v13, 2, v9")
        A("v_add_u32 v15, s2, v6")
        A("v_and_b32 v15, 3, v15")
        A("v_cmp_eq_u32 vcc, 1, v15")
        A("v_mov_b32 v15, 0x100000")
        A("s_nop 0")
        A("v_cndmask_b32 v15, 0, v15, vcc")
        A("v_add_u32 v6, v6, v15")
        A("v_add_u32 v9, v9, v15")
        A("s_waitcnt lgkmcnt(0)")
        A("global_load_dword v7, v12, s[12:13]")
        A("global_load_dword v14, v13, s[12:13]")
        for base, p in ((16, 6), (24, 8)):
            A(f"s_mov_b32 s{base}, s{p}"); A(f"s_mov_b32 s{base+1}, s{p+1}")
            A(f"s_mov_b32 s{base+2}, {KBYTES}"); A(f"s_mov_b32 s{base+3}, 0x20000")
        A("v_lshrrev_b32 v8, 2, v0")
        A("v_lshlrev_b32 v8, 11, v8")
        A("v_and_b32 v10, 3, v0")
        A("v_lshl_add_u32 v8, v10, 6, v8          ; tok*2048 + (l&3)*64")
        A("v_mov_b32 v19, 2048")
        A("v_mov_b32 v10, 0")
        A("s_waitcnt vmcnt(0)")
        A("v_cmp_lt_i32 vcc, 0, v7")
        A("v_cmp_lt_i32 s[40:41], 0, v14")
        A("v_min_i32 v7, v7, v19")
        A("v_min_i32 v14, v14, v19")
        A("v_cndmask_b32 v7, v19, v7, vcc")
        A("v_cndmask_b32 v14, v19, v14, s[40:41]")
        A("v_lshl_add_u32 v11, v7, 5, v6")
        A("v_lshl_add_u32 v14, v14, 5, v9")
        A("v_add_u32_dpp v15, v7, v7 row_shr:1 row_mask:0xf bank_mask:0xf bound_ctrl:0")
        A("v_sub_u32 v12, v14, v11")
        for k in range(1, 16):
            A(f"v_sub_u32_dpp v{12 + (k&1)}, v14, v11 row_ror:{k} row_mask:0xf bank_mask:0xf")
            A(f"v_alignbit_b32 v10, v10, v{12 + ((k-1)&1)}, 31")
            if k in (2, 4, 6):
                A(f"v_add_u32_dpp v15, v15, v15 row_shr:{ {2:2,4:4,6:8}[k] } row_mask:0xf bank_mask:0xf bound_ctrl:0")
            if k == 8:
                A("v_add_u32_dpp v15, v15, v15 row_bcast:15 row_mask:0xa bank_mask:0xf")
        A("v_alignbit_b32 v10, v10, v13, 31")
        A("v_bcnt_u32_b32 v10, v10, 0")
        A("v_readlane_b32 s40, v15, 31")
        A("v_mov_b32 v12, v10")
        A("s_nop 1")
        A("v_permlane32_swap_b32 v10, v12")
        A("v_add_u32 v10, v10, v12                ; rank")
        A("v_cvt_f32_u32 v13, s40")
        A("v_readlane_b32 s41, v10, s32")
        A(f"v_mul_f32 v13, {hex(f2u(pf_gain*pf_thr/1024))}, v13")
        A("v_cvt_f32_u32 v12, v7")
        A("s_mul_i32 s36, s41, 86")
        A("s_lshr_b32 s36, s36, 8                 ; rank / 3")
        A("s_mul_i32 s44, s36, 3")
        A("s_sub_u32 s44, s41, s44                ; rank % 3")
        A("s_sub_u32 s41, 31, s36")
        A("s_cmp_eq_u32 s35, 1")
        A("s_cselect_b32 s36, 100, s44")
        A("v_cmp_eq_u32 vcc, s41, v10")
        A(f"v_mul_f32 v12, {hex(f2u(pf_gain/32))}, v12")
        A("v_sub_f32 v12, v12, v13")
        A("v_cvt_i32_f32 v12, v12")
        A("v_lshrrev_b32 v13, 5, v7")
        A("v_min_i32 v12, v12, v13")
        A("s_ff1_i32_b32 s41, vcc_lo")
        A("v_readlane_b32 s45, v12, s41")
        A("s_lshl_b32 s43, s41, 9")
        A("v_add_u32 v1, s43, v1")
        A("s_add_u32 s37, s41, s2")
        A("s_and_b32 s37, s37, 7")
        A("s_lshl_b32 s37, s37, 8")
        A("s_add_u32 s36, s36, 1")
        A("s_nop 0")
        A("s_sub_i32 s45, s45, s36")
        A("global_load_dwordx2 v[2:3], v1, s[10:11]")
        A("v_readlane_b32 s38, v7, s32")
        A("v_readlane_b32 s55, v12, s32")
        A("s_getreg_b32 s48, hwreg(HW_REG_XCC_ID, 0, 3)")
        A("v_cvt_f32_u32 v24, s40")
        A("v_rcp_f32 v24, v24")
        A("v_cvt_f32_u32 v25, s38")
        A("s_add_u32 s38, s38, 31")
        A("s_lshr_b32 s38, s38, 5                 ; nt")
        A("s_add_u32 s42, s38, 3")
        A("s_lshr_b32 s42, s42, 2")
        A("s_lshl_b32 s42, s42, 1")
        A("v_mul_f32 v25, v25, v24")
        A(f"v_mul_f32 v25, {hex(f2u(32.0))}, v25")
        A("v_subrev_f32 v24, 1.0, v25")
        A("v_max_f32 v24, 0, v24")
        A("v_mul_f32 v24, v24, v24")
        A(f"v_mov_b32 v26, {hex(f2u(bias*256))}")
        A(f"v_mul_f32 v25, {hex(f2u(alpha*256))}, v25")
        A(f"v_mul_f32 v24, {hex(f2u(quad*256))}, v24")
        A("s_add_i32 s49, s45, 3")
        A("s_max_i32 s49, s49, 0")
        A("v_cvt_f32_u32 v27, s49")
        A("v_add_f32 v26, v26, v25")
        A(f"v_mul_f32 v27, {hex(f2u(hbt*256/3))}, v27")
        A("v_add_f32 v26, v26, v24")
        A("v_add_f32 v26, v26, v27")
        A("s_cmp_eq_u32 s35, 1")
        A(f"s_cselect_b32 s49, {hex(f2u(slow_mul))}, 1.0")
        A("v_mul_f32 v26, s49, v26")
        A("s_bitcmp1_b32 s48, 0")
        A(f"s_mov_b32 s49, {hex(f2u(1.0+par))}")
        A(f"s_cselect_b32 s49, {hex(f2u(1.0-par))}, s49")
        A("v_cvt_f32_u32 v27, s32")
        A("v_mul_f32 v26, s49, v26")
        A(f"v_mul_f32 v27, {hex(f2u(skew/32))}, v27")
        A(f"v_add_f32 v27, {hex(f2u(1.0-skew/2))}, v27")
        A("v_mul_f32 v26, v26, v27")
        A("v_cvt_u32_f32 v30, v26")
        A(f"v_mov_b32 v32, {NBUF}")
        A("s_lshl_b32 s48, s48, 5")
        A("s_add_u32 s49, s48, s32")
        A("v_mov_b32 v17, s49")
        A("v_and_b32 v28, 7, v0")
        A("v_lshlrev_b32 v28, 2, v28")
        A("v_add_u32 v28, s48, v28")
        A("s_max_i32 s55, s55, 0")
        A("s_cmp_eq_u32 s35, 1")
        A("s_cselect_b32 s55, s55, 0")
        A("v_cvt_f32_u32 v12, s38")
        A("v_cvt_f32_u32 v16, s55                 ; e")
        A(f"v_mov_b32 v18, {hex(f2u(hitw - 1.0))}")
        A("v_fma_f32 v12, v16, v18, v12")
        A("v_rcp_f32 v12, v12")
        A(f"s_mul_i32 s46, s42, {256 - int(pub_start*256)}")
        A("s_lshr_b32 s46, s46, 8")
        A(f"s_mul_i32 s50, s42, {256 - int(fb_start*256)}")
        A("s_lshr_b32 s50, s50, 8")
        A("v_mov_b32 v19, -1")
        A("s_mov_b32 s51, 0")
        A("s_sub_u32 s42, s42, 2")
        A("s_barrier")
        A("ds_write_b32 v32, v30")
        A("s_barrier")
        A("s_waitcnt vmcnt(0)")
        A("v_lshlrev_b32 v2, 15, v2")
        A("v_lshlrev_b32 v3, 15, v3")
        A("v_add_u32 v2, s37, v2")
        A("v_add_u32 v3, s37, v3")
        A("L_pf_loop:")
        if fb:
            A("s_cmp_eq_u32 s51, 0")
            A("s_cbranch_scc1 L_pf_nofb")
            A("s_waitcnt vmcnt(0)")
            A("v_msad_u8 v33, v19, v30, 0")
            A("v_sad_u8 v30, v30, 0, 0")
            A("v_lshl_add_u32 v30, v33, 16, v30")
            A("s_nop 1")
            for sh in (1, 2, 4):
                A(f"v_add_u32_dpp v30, v30, v30 row_shr:{sh} row_mask:0xf bank_mask:0xf bound_ctrl:0")
                A("s_nop 1")
            A("v_readlane_b32 s51, v30, 7")
            A("s_nop 3")
            A("s_lshr_b32 s54, s51, 16")
            A("s_and_b32 s51, s51, 0xffff")
            A("s_add_u32 s51, s51, s54")
            A("v_cvt_f32_u32 v33, s51")
            A("v_cvt_f32_u32 v30, s54")
            A("v_rcp_f32 v33, v33")
            A("s_nop 0")
            A("v_mul_f32 v30, v30, v33")
            A(f"v_max_f32 v33, {hex(f2u(fb_dmin))}, v30")
            A("v_rcp_f32 v33, v33")
            A("v_sub_f32 v30, v31, v30")
            A(f"v_mul_f32 v30, {hex(f2u(fb_g))}, v30")
            A("v_fma_f32 v30, v30, v33, 1.0")
            A(f"v_max_f32 v30, {hex(f2u(fb_lo))}, v30")
            A(f"v_min_f32 v30, {hex(f2u(fb_hi))}, v30")
            A("v_mul_f32 v30, v30, v26")
            A("v_cvt_u32_f32 v30, v30")
            A("ds_write_b32 v32, v30")
            A("s_mov_b32 s51, 0")
            A("L_pf_nofb:")
        A("s_max_i32 s47, s45, 0")
        A("s_lshl_b32 s54, s42, 1")
        A("v_cvt_f32_u32 v15, s54")
        A("v_readlane_b32 s52, v2, s47")
        A("v_readlane_b32 s53, v3, s47")
        A(f"v_subrev_f32 v14, {hex(f2u(pub_off/2))}, v15")
        A("v_min_f32 v13, v15, v16")
        A("v_fma_f32 v15, v13, v18, v15")
        A("v_min_f32 v13, v14, v16")
        A("v_fma_f32 v14, v13, v18, v14")
        A("v_mul_f32 v14, v14, v12")
        A(f"v_mov_b32 v13, {hex(f2u(255.5))}")
        A(f"v_mul_f32 v14, {hex(f2u(-255.0))}, v14")
        A("v_add_f32 v14, v14, v13")
        A("v_min_f32 v14, v14, v13")
        A("v_cvt_u32_f32 v14, v14")
        if fb:
            A("s_cmp_gt_u32 s42, s46")
            A("s_cbranch_scc1 L_pf_nopub")
            A("s_mov_b64 exec, 1")
            A("global_store_byte v17, v14, s[30:31]")
            A("s_mov_b64 exec, -1")
            A("s_cmp_gt_u32 s42, s50")
            A("s_cbranch_scc1 L_pf_nopub")
            A("s_waitcnt lgkmcnt(0)")
            A(f"global_load_dword v30, v28, s[30:31] {pollf}")
            A("v_mul_f32 v31, v15, v12")
            A("s_mov_b32 s51, 1")
            A("L_pf_nopub:")
        A("s_cmp_lt_i32 s45, 0")
        if fb:
            A("s_cbranch_scc1 L_pf_nov")
        else:
            A("s_cbranch_scc1 L_pf_exit")
        A("s_nop 1")
        A(f"buffer_load_dword v20, v8, s[16:19], s52 offen {pf_flags}")
        A(f"buffer_load_dword v21, v8, s[16:19], s53 offen {pf_flags}")
        A("s_waitcnt vmcnt(0)")
        A(f"buffer_load_dword v22, v8, s[24:27], s52 offen {pf_flags}")
        A(f"buffer_load_dword v23, v8, s[24:27], s53 offen {pf_flags}")
        A("s_sub_i32 s45, s45, 3")
        A("L_pf_nov:")
        A("s_cmp_le_i32 s42, 1")
        A("s_cbranch_scc1 L_pf_exit")
        A("s_sub_u32 s42, s42, 1")
        A("s_barrier")
        A("s_branch L_pf_loop")
        A("L_pf_exit:")
        A("s_endpgm")

    P0, S0, O0, Q0, F0, B0, X0, KA = 40, 48, 64, 80, 112, 144, 176, 16
    VA0, VA1, vM, vL = 24, 25, 28, 29
    vPW, vPR, vMW, vMR = 4, 5, 6, 7
    A("L_consumer:")
    A("s_sub_u32 s34, s34, 1                  ; cw")
    A("v_and_b32 v1, 31, v0")
    A("v_lshrrev_b32 v2, 5, v0                ; hf")
    A("s_lshl_b32 s35, s32, 16")
    A("s_lshl_b32 s36, s33, 13")
    A("s_add_u32 s35, s35, s36")
    A("v_lshlrev_b32 v3, 8, v1")
    A("v_lshl_add_u32 v3, v2, 4, v3")
    A("v_add_u32 v3, s35, v3")
    A("s_lshl_b32 s36, s32, 2")
    A("s_waitcnt lgkmcnt(0)")
    A("s_load_dword s37, s[12:13], s36")
    if not qdma:
        for kk in range(8):
            A(f"global_load_dwordx4 v[{Q0+4*kk}:{Q0+4*kk+3}], v3, s[4:5] offset:{32*kk} {qflags}")
    A("s_lshl_b32 s46, s34, 13                ; cw*8192")
    A("v_and_b32 v8, 3, v0")
    A("v_bfe_u32 v9, v0, 2, 2")
    A("v_lshl_add_u32 v10, v8, 2, v9          ; g")
    A("v_xor_b32 v10, v10, v2")
    A("v_lshlrev_b32 v10, 4, v10")
    A("v_lshl_add_u32 v10, v1, 8, v10")
    A(f"v_add_u32 v{KA}, s46, v10")
    if qdma:
        A(f"v_add_u32 v{S0}, {QBUF}, v10")
        for kk in range(1, 8):
            A(f"v_xor_b32 v{S0+kk}, {32*kk}, v{S0}")
    for kk in range(1, 8):
        A(f"v_xor_b32 v{KA+kk}, {32*kk}, v{KA}")
    A("v_lshl_add_u32 v10, v2, 2, v9")
    A("v_lshlrev_b32 v10, 8, v10")
    A("v_xor_b32 v11, s34, v9")
    A("v_lshl_add_u32 v10, v11, 6, v10")
    A("v_bfe_u32 v11, v0, 4, 1")
    A("v_bfe_u32 v12, v0, 1, 1")
    A("v_lshl_add_u32 v11, v11, 1, v12")
    A("v_xor_b32 v11, v11, v2")
    A("v_lshl_add_u32 v10, v11, 4, v10")
    A("v_and_b32 v11, 1, v0")
    A(f"v_lshl_add_u32 v{VA0}, v11, 3, v10")
    A(f"v_xor_b32 v{VA1}, 32, v{VA0}")
    A("v_lshlrev_b32 v10, 4, v0")
    A(f"v_add_u32 v{vPR}, {PBUF}, v10")
    A("s_lshl_b32 s47, s34, 11")
    A(f"v_add_u32 v{vPW}, s47, v{vPR}")
    A("v_lshlrev_b32 v11, 5, v1")
    A(f"v_add_u32 v{vMR}, {MBUF}, v11")
    A("s_lshl_b32 s47, s34, 3")
    A(f"v_lshl_add_u32 v{vMW}, v2, 2, v{vMR}")
    A(f"v_add_u32 v{vMW}, s47, v{vMW}")
    for i in range(16):
        A(f"v_mov_b32 v{O0+i}, 0")
    A(f"v_mov_b32 v{vM}, {hex(f2u(-1e30))}")
    A(f"v_mov_b32 v{vL}, 0")
    A("v_mov_b32 v15, 0xff800000")
    A("s_lshl_b32 s47, s34, 6")
    A("v_add_u32 v3, s47, v3")
    if poison:
        A("v_mov_b32 v32, -1"); A("v_mov_b32 v33, -1"); A("v_mov_b32 v34, -1"); A("v_mov_b32 v35, -1")
        A("v_add_u32 v11, s46, v10")
        A("v_add_u32 v11, 0x10000, v11")
        for i in range(8):
            A(f"ds_write_b128 v11, v[32:35] offset:{1024*i}")
    A("s_waitcnt lgkmcnt(0)")
    A(f"s_mov_b32 s48, {hex(f2u(128**-0.5*math.log2(math.e)))}")
    A("s_cmp_gt_i32 s37, 0")
    A("s_cselect_b32 s48, s48, 0")
    A("s_cselect_b32 s37, s37, 2048")
    A("s_min_i32 s37, s37, 2048")
    A("s_add_u32 s38, s37, 31")
    A("s_lshr_b32 s38, s38, 5                 ; nt")
    A("s_sub_u32 s40, s38, 1")
    A("s_and_b32 s41, s40, 3")
    A("s_add_u32 s41, s41, 1                  ; m")
    A("s_add_u32 s42, s38, 3")
    A("s_lshr_b32 s42, s42, 2")
    A("s_lshl_b32 s40, s40, 5")
    A("s_sub_u32 s40, s37, s40")
    A("s_cmp_eq_u32 s34, 0")
    A("s_cselect_b32 s40, s40, 64")
    A("s_cmp_lt_u32 s34, s41")
    A("s_cselect_b32 s40, s40, 0")
    A("v_lshlrev_b32 v14, 2, v2")
    A("v_sub_u32 v14, s40, v14                ; thr")
    A("s_cbranch_scc1 L_active")
    A("v_add_u32 v11, s46, v10")
    A("v_add_u32 v11, 0x10000, v11")
    for i in range(8):
        A(f"ds_write_b128 v11, v[{O0}:{O0+3}] offset:{1024*i}")
    A("L_active:")
    A("s_mov_b32 s43, 1")
    A("s_mov_b32 s44, 0x8000")
    A("s_mov_b32 s45, 0")
    A("s_waitcnt vmcnt(0) lgkmcnt(0)")
    A("s_barrier")
    if stamps:
        A("s_memrealtime s[62:63]")
        A("s_waitcnt lgkmcnt(0)")
    if qdma:
        for kk in range(8):
            A(f"ds_read_b128 v[{Q0+4*kk}:{Q0+4*kk+3}], v{S0+kk}")
    A("s_branch L_X")
    A("L_E:")
    A(f"v_max3_f32 v30, v{X0}, v{X0+1}, v{X0+2}")
    A(f"v_max3_f32 v31, v{X0+3}, v{X0+4}, v{X0+5}")
    A(f"v_max3_f32 v30, v30, v{X0+6}, v{X0+7}")
    A(f"v_max3_f32 v30, v30, v31, v{vM}        ; m_new")
    A(f"v_sub_f32 v31, v{vM}, v30")
    A("v_mul_f32 v32, s48, v30                ; mc")
    A("v_mul_f32 v31, s48, v31")
    A(f"v_mov_b32 v{vM}, v30")
    A("v_exp_f32 v34, v31                     ; alpha")
    for v in range(16):
        A(f"v_fma_f32 v{S0+v}, v{S0+v}, s48, -v32")
    for v in range(16):
        A(f"v_exp_f32 v{S0+v}, v{S0+v}")
    A(f"v_mul_f32 v{vL}, v{vL}, v34")
    for i in range(8):
        A(f"v_cvt_pk_bf16_f32 v{P0+i}, v{S0+2*i}, v{S0+2*i+1}")
    A(f"ds_write_b128 v{vPW}, v[{P0}:{P0+3}]")
    A(f"ds_write_b128 v{vPW}, v[{P0+4}:{P0+7}] offset:1024")
    A(f"v_add_f32 v30, v{S0}, v{S0+1}")
    A(f"v_add_f32 v31, v{S0+2}, v{S0+3}")
    for v in range(4, 16, 2):
        A(f"v_add_f32 v30, v30, v{S0+v}")
        A(f"v_add_f32 v31, v31, v{S0+v+1}")
    A("v_add_f32 v30, v30, v31")
    A(f"v_add_f32 v{vL}, v{vL}, v30")
    for i in range(0, 16, 2):
        A(f"v_pk_mul_f32 v[{O0+i}:{O0+i+1}], v[{O0+i}:{O0+i+1}], v[34:35] op_sel_hi:[1,0]")
    A(f"v_xor_b32 v{vPW}, 0x2000, v{vPW}")
    A("s_sub_u32 s42, s42, 1")
    A("s_cmp_eq_u32 s42, 0")
    A("s_cbranch_scc0 L_notlast")
    A(f"v_or_b32 v{vMW}, 0x400, v{vMW}")
    A(f"v_or_b32 v{vMR}, 0x400, v{vMR}")
    A(f"ds_write_b32 v{vMW}, v{vL} offset:1024")
    A(f"v_add_u32 v{vMR}, 1024, v{vMR}")
    A("s_branch L_B")
    A("L_notlast:")
    A("s_cmp_eq_u32 s45, 1")
    A("s_cbranch_scc1 L_X")
    A("s_waitcnt lgkmcnt(0)")
    A("s_barrier")
    A("s_add_u32 s45, s45, 1")
    A("L_X:")
    for kk in range(8):
        A(f"ds_read_b128 v[{F0+4*kk}:{F0+4*kk+3}], v{KA+kk}")
    for kk in range(8):
        A(f"s_waitcnt lgkmcnt({7-kk})")
        c = "0" if kk == 0 else f"v[{S0}:{S0+15}]"
        A(f"v_mfma_f32_32x32x16_bf16 v[{S0}:{S0+15}], v[{F0+4*kk}:{F0+4*kk+3}], v[{Q0+4*kk}:{Q0+4*kk+3}], {c}")
    for i in range(8): A(f"v_xor_b32 v{KA+i}, s44, v{KA+i}")
    A("s_mov_b32 s44, 0x10000")
    A("s_cmp_eq_u32 s43, 0")
    A("s_nop 1")
    A("s_cbranch_scc1 L_nomask")
    for v in range(16):
        A(f"v_cmp_lt_i32 vcc, {8*(v>>2)+(v&3)}, v14")
        A("s_nop 1")
        A(f"v_cndmask_b32 v{S0+v}, v15, v{S0+v}, vcc")
    A("L_nomask:")
    A(f"v_max3_f32 v30, v{S0}, v{S0+1}, v{S0+2}")
    A(f"v_max3_f32 v31, v{S0+3}, v{S0+4}, v{S0+5}")
    A(f"v_max3_f32 v30, v30, v{S0+6}, v{S0+7}")
    A(f"v_max3_f32 v31, v31, v{S0+8}, v{S0+9}")
    A(f"v_max3_f32 v30, v30, v{S0+10}, v{S0+11}")
    A(f"v_max3_f32 v31, v31, v{S0+12}, v{S0+13}")
    A(f"v_max3_f32 v30, v30, v{S0+14}, v{S0+15}")
    A("v_max_f32 v30, v30, v31")
    A(f"ds_write_b32 v{vMW}, v30")
    A(f"v_xor_b32 v{vMW}, 0x400, v{vMW}")
    A("L_B:")
    A("s_add_u32 s45, s45, 1")
    A("s_and_b32 s47, s45, 3")
    A("s_lshl_b32 s47, s47, 15")
    A(f"v_add_u32 v26, s47, v{VA0}")
    A(f"v_add_u32 v27, s47, v{VA1}")
    A("s_cmp_eq_u32 s43, 0")
    A("s_mov_b32 s43, 0")
    A("s_waitcnt lgkmcnt(0)")
    A("s_barrier")
    A("s_cbranch_scc1 L_PV")
    A(f"ds_read_b128 v[{X0}:{X0+3}], v{vMR}")
    A(f"ds_read_b128 v[{X0+4}:{X0+7}], v{vMR} offset:16")
    A(f"v_xor_b32 v{vMR}, 0x400, v{vMR}")
    A("s_waitcnt lgkmcnt(0)")
    A("s_branch L_E")
    A("L_PV:")
    def rd(i):
        s, s2 = i >> 1, i & 1
        r = F0 + 4*i
        A(f"ds_read_b128 v[{B0+4*i}:{B0+4*i+3}], v{vPR} offset:{2048*s + 1024*s2}")
        A(f"ds_read_b64_tr_b16 v[{r}:{r+1}], v26 offset:{8192*s + 4096*s2}")
        A(f"ds_read_b64_tr_b16 v[{r+2}:{r+3}], v27 offset:{8192*s + 4096*s2 + 2048}")
    AHEAD = 4
    for i in range(AHEAD): rd(i)
    issued = 3*AHEAD
    for i in range(8):
        if i + AHEAD < 8:
            rd(i + AHEAD); issued += 3
        elif i + AHEAD == 8:
            A(f"ds_read_b128 v[{X0}:{X0+3}], v{vMR}")
            A(f"ds_read_b128 v[{X0+4}:{X0+7}], v{vMR} offset:16")
            issued += 2
        A(f"s_waitcnt lgkmcnt({issued - 3*(i+1)})")
        r = F0 + 4*i
        A(f"v_mfma_f32_32x32x16_bf16 v[{O0}:{O0+15}], v[{r}:{r+3}], v[{B0+4*i}:{B0+4*i+3}], v[{O0}:{O0+15}]")
    A(f"v_xor_b32 v{vPR}, 0x2000, v{vPR}")
    A(f"v_xor_b32 v{vMR}, 0x400, v{vMR}")
    A("s_cmp_lg_u32 s42, 0")
    A("s_waitcnt lgkmcnt(0)")
    A("s_cbranch_scc1 L_E")
    A(f"v_add_f32 v30, v{X0}, v{X0+1}")
    A(f"v_add_f32 v31, v{X0+2}, v{X0+3}")
    A(f"v_add_f32 v32, v{X0+4}, v{X0+5}")
    A(f"v_add_f32 v33, v{X0+6}, v{X0+7}")
    A("v_add_f32 v30, v30, v31")
    A("v_add_f32 v32, v32, v33")
    A("v_add_f32 v30, v30, v32")
    A("v_rcp_f32 v34, v30")
    if stamps:
        A("s_memrealtime s[64:65]")
    A("s_nop 1")
    for i in range(0, 16, 2):
        A(f"v_pk_mul_f32 v[{O0+i}:{O0+i+1}], v[{O0+i}:{O0+i+1}], v[34:35] op_sel_hi:[1,0]")
    for i in range(8):
        A(f"v_cvt_pk_bf16_f32 v{P0+i}, v{O0+2*i}, v{O0+2*i+1}")
    A(f"v_permlane32_swap_b32 v{P0}, v{P0+2}")
    A(f"v_permlane32_swap_b32 v{P0+1}, v{P0+3}")
    A(f"global_store_dwordx4 v3, v[{P0}:{P0+3}], s[14:15] {oflags}")
    A(f"v_permlane32_swap_b32 v{P0+4}, v{P0+6}")
    A(f"v_permlane32_swap_b32 v{P0+5}, v{P0+7}")
    A(f"global_store_dwordx4 v3, v[{P0+4}:{P0+7}], s[14:15] offset:32 {oflags}")
    if stamps:
        A("s_add_u32 s34, s34, 1")
        A("s_waitcnt vmcnt(0)")
        A("L_stamp:")
        A("s_memrealtime s[66:67]")
        A("s_mul_i32 s35, s2, 5"); A("s_add_u32 s35, s35, s34"); A("s_lshl_b32 s35, s35, 5")
        A("s_waitcnt lgkmcnt(0)")
        A("v_mov_b32 v12, s60"); A("v_mov_b32 v13, s61"); A("v_mov_b32 v14, s66"); A("v_mov_b32 v15, s67")
        A("v_mov_b32 v20, s62"); A("v_mov_b32 v21, s63"); A("v_mov_b32 v22, s64"); A("v_mov_b32 v23, s65")
        A("v_mov_b32 v16, s35")
        A("v_cmp_eq_u32 vcc, 0, v0")
        A("s_and_saveexec_b64 s[46:47], vcc")
        A("global_store_dwordx4 v16, v[12:15], s[68:69]")
        A("global_store_dwordx4 v16, v[20:23], s[68:69] offset:16")
        A("s_waitcnt vmcnt(0)")
    A("L_end:")
    A("s_endpgm")
    A('.section .rodata,"a"')
    A(".p2align 6")
    A(f".amdhsa_kernel {NAME}_kernel")
    A("  .amdhsa_next_free_vgpr 184")
    A("  .amdhsa_next_free_sgpr 88")
    A("  .amdhsa_accum_offset 184")
    A("  .amdhsa_group_segment_fixed_size 0")
    A("  .amdhsa_kernarg_size 64")
    A("  .amdhsa_user_sgpr_count 2")
    A("  .amdhsa_user_sgpr_kernarg_segment_ptr 1")
    A("  .amdhsa_system_sgpr_workgroup_id_x 1")
    A(".end_amdhsa_kernel")
    return "\n".join(o) + "\n"

if __name__ == "__main__":
    out = sys.argv[1]
    kw = {}
    for a in sys.argv[2:]:
        k, v = a.split("=", 1)
        try: v = json.loads(v)
        except Exception: pass
        kw[k] = v
    open(out, "w").write(gen(**kw))
```

```python
import sys, struct, math, json
NAME = "standalone__paged_block_table_kv_pagedattention__sampling"
KBYTES = 4100*32768
def f2u(x): return struct.unpack("<I", struct.pack("<f", x))[0]
HEADER = open("cdna_kernels/%s.s.ref" % NAME).read().split("; Override")[0]

PBUF = 131072
MBUF = PBUF + 16384
LBUF = MBUF + 2048
QBUF = LBUF + 1024
NBUF = QBUF + 8192
LDS_TOTAL = NBUF + 256

def gen(flags="nt", nlo=8, nhi=34, alpha=22.0, bias=0.0, stamps=False, qflags="", oflags="",
        pf=True, pf_thr=1.05, pf_gain=2.0, pf_k=1, pf_flags="", n0=32, poison=False, hb_gain=0.0, hb_thr=0.95,
        slow_mul=1.0, stall=False, quad=0.0, space=3, codepf=0, qdma=True,
        fb=True, fb_g=1.0, fb_dmin=0.18, fb_lo=0.8, fb_hi=1.25, fb_start=0.3, pub_start=0.2, pub_off=3.0, fb_full=False, fb_every=1, pub_every=1, par=0.0, hbt=0.0, skew=0.0, pollf="nt", hitw=0.55, rot=1, nstep=1, layout=1, cpf2=1, endboost=0.0, endleft=3, otouch=0, otr=1, split=1, peel=1, egap=8, own_off=0.0):
    o = []
    A = o.append
    NWV = 6 if pf else 5
    A(HEADER.rstrip())
    A(f"; @launch grid=(256,1,1) block=({64*NWV},1,1) lds={LDS_TOTAL}")
    A('.amdgcn_target "amdgcn-amd-amdhsa--gfx950"')
    A(".text")
    A(f".globl {NAME}_kernel")
    A(".p2align 8")
    A(f".type {NAME}_kernel,@function")
    A(f"{NAME}_kernel:")
    A("s_load_dwordx8 s[4:11], s[0:1], 0      ; q k v bt")
    A("s_load_dwordx4 s[12:15], s[0:1], 32")
    A("s_load_dwordx2 s[30:31], s[0:1], 48    ; debug")
    A("s_cmp_ge_u32 s2, 256")
    A("s_cbranch_scc1 L_end")
    if stamps:
        A("s_memrealtime s[60:61]")
        A("s_load_dwordx2 s[68:69], s[0:1], 56")
    if cpf2:
        A("s_getpc_b64 s[28:29]")
        A("L_pc0:")
        A("v_subrev_u32 v2, 64, v0")
        A("v_lshlrev_b32 v2, 7, v2")
        A("v_cmp_gt_u32 vcc, L_end-L_pc0, v2")
        A("s_and_saveexec_b64 s[36:37], vcc")
        A("s_cbranch_execz L_nocpf")
        A("global_load_dword v39, v2, s[28:29]")
        A("L_nocpf:")
        A("s_mov_b64 exec, -1")
    A("s_lshr_b32 s32, s2, 3                  ; b")
    if rot:
        A("s_add_u32 s33, s2, s32")
        A("s_and_b32 s33, s33, 7                  ; h")
    else:
        A("s_and_b32 s33, s2, 7                   ; h")
    A("v_lshrrev_b32 v1, 6, v0")
    A("v_and_b32 v0, 63, v0                   ; lane")
    A("v_readfirstlane_b32 s34, v1            ; wave")
    A("s_lshl_b32 s35, s32, 9")
    A("v_lshlrev_b32 v1, 3, v0")
    A("s_cmp_lg_u32 s34, 0")
    A("s_cbranch_scc1 L_notloader")

    A("s_setprio 3")
    A("v_add_u32 v1, s35, v1")
    A("s_lshl_b32 s35, s32, 2")
    A("v_lshrrev_b32 v4, 4, v0")
    A("v_and_b32 v5, 15, v0")
    A("v_lshlrev_b32 v16, 2, v4")
    A("v_xor_b32 v16, v5, v16")
    A("v_lshlrev_b32 v16, 4, v16")
    if qdma:
        A("v_lshl_add_u32 v12, v4, 8, v16")
        for j in range(1, 4):
            A(f"v_xor_b32 v{12+j}, {16*j}, v12")
        A("s_lshl_b32 s52, s32, 3")
        A("s_add_u32 s52, s52, s33")
        A("s_lshl_b32 s52, s52, 13")
        A("s_add_u32 s53, s52, 4096")
        A(f"s_mov_b32 s26, {32*32*8*128*2}")
        A("s_mov_b32 s27, 0x20000")
        A(f"s_mov_b32 m0, {QBUF}")
    A("s_waitcnt lgkmcnt(0)")
    A("global_load_dwordx2 v[2:3], v1, s[10:11]")
    A("s_load_dword s37, s[12:13], s35")
    if stamps: A("s_memrealtime s[62:63]")
    if qdma:
        A("s_mov_b32 s24, s4"); A("s_mov_b32 s25, s5")
        for j in range(8):
            if j == 4:
                A("s_add_u32 m0, m0, 4096"); A("s_nop 0")
            A(f"buffer_load_dwordx4 v{12 + (j&3)}, s[24:27], s{52 + j//4} offen offset:{1024*(j&3)} {qflags} lds")
    for base in (16, 20):
        A(f"s_mov_b32 s{base}, s6"); A(f"s_mov_b32 s{base+1}, s7")
        A(f"s_mov_b32 s{base+2}, {KBYTES}"); A(f"s_mov_b32 s{base+3}, 0x20000")
    A("v_lshl_add_u32 v8, v4, 11, v16")
    for j in range(1, 4):
        A(f"v_xor_b32 v{8+j}, {16*j}, v8")
        A(f"v_add_u32 v{8+j}, {(8192-1024)*j}, v{8+j}")
    A("v_lshlrev_b32 v21, 5, v0")
    A("s_lshl_b32 s36, s33, 8                 ; h*256")
    A(f"s_mov_b32 s59, {KBYTES}")
    A("s_mov_b32 s42, 0")
    A("s_mov_b32 s56, 0                       ; pos")
    A("s_mov_b32 s54, 128")
    A("s_mov_b32 s49, 0")
    A("s_waitcnt lgkmcnt(0)")
    A("s_cmp_gt_i32 s37, 0")
    A("s_cselect_b32 s37, s37, 2048")
    A("s_min_i32 s37, s37, 2048               ; cl_eff")
    A("v_sub_u32 v21, s37, v21")
    A("s_add_u32 s38, s37, 31")
    A("s_lshr_b32 s38, s38, 5                 ; nt")
    A("v_med3_i32 v4, v21, 0, 16")
    A("v_subrev_u32 v21, 16, v21")
    A("v_med3_i32 v5, v21, 0, 16")
    A("v_lshlrev_b32 v4, 11, v4")
    A("v_lshlrev_b32 v5, 11, v5")
    A("s_sub_u32 s48, s38, 1")
    A("s_and_b32 s41, s48, 3")
    A("s_add_u32 s41, s41, 1")
    A("s_mov_b32 s55, s48                     ; vtop")
    A("s_sub_i32 s40, s48, s41")
    A("s_mov_b32 s50, s41")
    A("s_mov_b32 s58, s41                     ; vcnt")
    A("s_mov_b32 s43, s41                     ; E")
    A("s_cmp_ge_i32 s40, 0")
    A("s_cselect_b32 s44, 4, 0")
    A("s_mov_b32 s45, s41                     ; inc1")
    A("s_lshl_b32 s47, s38, 1")
    A("s_mov_b32 s46, s43")
    A(f"s_mov_b32 s39, {n0*256}")
    A(f"v_mov_b32 v32, {NBUF}")
    A(f"v_mov_b32 v33, {n0*256}")
    A("ds_write_b32 v32, v33")
    A(f"s_waitcnt vmcnt({8 if qdma else 0})")
    if stamps: A("s_memrealtime s[64:65]")
    A("v_lshlrev_b32 v2, 15, v2")
    A("v_lshlrev_b32 v3, 15, v3")
    A("v_add_u32 v4, v4, v2")
    A("v_add_u32 v5, v5, v3")
    A("v_min_u32 v4, s59, v4")
    A("v_min_u32 v5, s59, v5")
    A("v_add_u32 v2, s36, v2")
    A("v_add_u32 v3, s36, v3")
    if stall:
        A("s_waitcnt lgkmcnt(0)")
        A("s_mov_b32 s62, 0"); A("s_mov_b32 s63, 0"); A("s_mov_b32 s64, 0"); A("s_mov_b32 s65, 0")
    Ns = list(range(nlo, nhi+1, nstep))
    assert n0 in Ns
    def version(NN, fall=False):
        q, p = (NN-1) // 8, (NN-1) % 8
        A(f"L_ld{NN}:")
        A("v_readlane_b32 s52, v2, s48")
        A("v_readlane_b32 s18, v4, s48")
        A("v_readlane_b32 s53, v3, s48")
        A("v_readlane_b32 s22, v5, s48")
        A("s_mov_b32 m0, s49")
        A("s_sub_u32 s48, s48, 1")
        A("s_add_u32 s49, s49, 8192")
        A(f"s_sub_i32 s51, s42, {q}")
        A("s_add_u32 s42, s42, 1")
        for j in range(8):
            if j == 4: A("s_add_u32 m0, m0, 4096")
            if j == 6: A("ds_read_b32 v33, v32")
            if j == p: A("s_cmp_lt_i32 s51, s46")
            A(f"s_waitcnt vmcnt({NN-1})")
            if j == p:
                A(f"s_cbranch_scc1 L_ld{NN}_np")
                A("s_barrier")
                A("s_add_u32 s43, s43, s44")
                A(f"s_add_u32 s51, s51, {space}")
                A("s_max_i32 s46, s43, s51")
                A("s_mov_b32 s44, s45")
                A("s_mov_b32 s45, 4")
                A(f"L_ld{NN}_np:")
            srd = 16 if j < 4 else 20
            A(f"buffer_load_dwordx4 v{8 + (j&3)}, s[{srd}:{srd+3}], s{52 + j//4} offen offset:{1024*(j&3)} {flags} lds")
        A("s_sub_u32 s50, s50, 1")
        A("s_cmp_lg_u32 s50, 0")
        A(f"s_cbranch_scc1 L_ld{NN}")
        if not fall: A("s_branch L_next")
    if layout:
        A("s_nop 0")
        version(n0, fall=True)
    else:
        A(f"s_branch L_ld{n0}")
    A("L_next:")
    A("s_waitcnt lgkmcnt(0)")
    A("v_readfirstlane_b32 s39, v33")
    A("L_next2:")
    A("s_add_u32 s56, s56, 1")
    A("s_cmp_lt_i32 s55, 0")
    A("s_cbranch_scc1 L_drain")
    A("s_and_b32 s49, s56, 3")
    A("s_lshl_b32 s49, s49, 15")
    A("s_bitcmp1_b32 s56, 0")
    A("s_cbranch_scc0 L_setV")
    A("s_cmp_ge_i32 s40, 0")
    A("s_cbranch_scc1 L_setK")
    A("s_cmp_eq_u32 s56, 1")
    A("s_cbranch_scc1 L_next2")
    A("L_setV:")
    A("s_mov_b32 s16, s8"); A("s_mov_b32 s17, s9"); A("s_mov_b32 s20, s8"); A("s_mov_b32 s21, s9")
    A("s_mov_b32 s48, s55")
    A("s_mov_b32 s50, s58")
    A("s_sub_i32 s55, s55, s58")
    A("s_mov_b32 s58, 4")
    A("s_branch L_disp")
    A("L_setK:")
    A("s_mov_b32 s16, s6"); A("s_mov_b32 s17, s7"); A("s_mov_b32 s20, s6"); A("s_mov_b32 s21, s7")
    A("s_mov_b32 s48, s40")
    A("s_mov_b32 s50, 4")
    A("s_sub_i32 s40, s40, 4")
    A("L_disp:")
    A("s_add_u32 s54, s54, s39")
    A("s_lshr_b32 s57, s54, 8")
    A(f"s_and_b32 s54, s54, {256*nstep-1}")
    def dispatch(lst):
        if len(lst) == 1:
            A(f"s_branch L_ld{lst[0]}")
            return
        mid = len(lst)//2
        lab = f"L_disp{lst[mid]}_{lst[-1]}"
        A(f"s_cmp_ge_u32 s57, {lst[mid]}")
        if len(lst) - mid == 1:
            A(f"s_cbranch_scc1 L_ld{lst[mid]}")
            dispatch(lst[:mid])
        else:
            A(f"s_cbranch_scc1 {lab}")
            dispatch(lst[:mid])
            A(f"{lab}:")
            dispatch(lst[mid:])
    dispatch(Ns)
    for NN in Ns:
        if layout and NN == n0: continue
        version(NN)
    A("L_drain:")
    A("s_sub_i32 s51, s47, s43                ; rem")
    for c in range(6, -1, -1):
        if c == 0 and split:
            A("s_cmp_gt_u32 s47, 8")
            A("s_cbranch_scc1 L_last3")
            A("s_waitcnt vmcnt(0)")
            A("L_last3:")
            A(f"s_waitcnt vmcnt({8*split})")
            A("s_barrier")
            A("s_waitcnt vmcnt(0)")
            A("s_barrier")
            break
        A(f"L_drain{c}:")
        A(f"s_cmp_lt_i32 s51, {c}")
        A(f"s_cbranch_scc1 L_drain{c}_n")
        A(f"s_waitcnt vmcnt({8*c})")
        A("s_barrier")
        A("s_sub_i32 s51, s51, s44")
        A("s_mov_b32 s44, s45")
        A("s_mov_b32 s45, 4")
        A(f"s_branch L_drain{c}")
        A(f"L_drain{c}_n:")
    if stamps:
        A("s_branch L_stamp")
    A("s_endpgm")

    A("L_notloader:")
    if pf:
        A("s_cmp_lt_u32 s34, 5")
        A("s_cbranch_scc1 L_consumer")
        if codepf:
            A("s_getpc_b64 s[28:29]")
            A("L_pcref:")
            A("v_lshlrev_b32 v20, 6, v0")
            A("s_add_u32 s28, s28, L_E0-L_pcref")
            A("s_addc_u32 s29, s29, 0")
            A(f"v_min_u32 v20, L_end-L_E0, v20")
            A("global_load_dword v21, v20, s[28:29]")
        A("s_and_b32 s35, s33, 3")
        A("v_and_b32 v6, 31, v0")
        A("v_lshrrev_b32 v9, 5, v0")
        A("v_lshlrev_b32 v9, 4, v9")
        A("v_xor_b32 v9, v9, v6")
        A("v_lshlrev_b32 v12, 2, v6")
        A("v_lshlrev_b32 v13, 2, v9")
        A("v_add_u32 v15, s2, v6")
        A("v_and_b32 v15, 3, v15")
        A("v_cmp_eq_u32 vcc, 1, v15")
        A("v_mov_b32 v15, 0x100000")
        A("s_nop 0")
        A("v_cndmask_b32 v15, 0, v15, vcc")
        A("v_add_u32 v6, v6, v15")
        A("v_add_u32 v9, v9, v15")
        A("s_waitcnt lgkmcnt(0)")
        A("global_load_dword v7, v12, s[12:13]")
        A("global_load_dword v14, v13, s[12:13]")
        for base, p in ((16, 6), (24, 8)):
            A(f"s_mov_b32 s{base}, s{p}"); A(f"s_mov_b32 s{base+1}, s{p+1}")
            A(f"s_mov_b32 s{base+2}, {KBYTES}"); A(f"s_mov_b32 s{base+3}, 0x20000")
        A("v_lshrrev_b32 v8, 2, v0")
        A("v_lshlrev_b32 v8, 11, v8")
        A("v_and_b32 v10, 3, v0")
        A("v_lshl_add_u32 v8, v10, 6, v8          ; tok*2048 + (l&3)*64")
        A("v_mov_b32 v19, 2048")
        A("v_mov_b32 v10, 0")
        A("s_waitcnt vmcnt(0)")
        A("v_cmp_lt_i32 vcc, 0, v7")
        A("v_cmp_lt_i32 s[40:41], 0, v14")
        A("v_min_i32 v7, v7, v19")
        A("v_min_i32 v14, v14, v19")
        A("v_cndmask_b32 v7, v19, v7, vcc")
        A("v_cndmask_b32 v14, v19, v14, s[40:41]")
        A("v_lshl_add_u32 v11, v7, 5, v6")
        A("v_lshl_add_u32 v14, v14, 5, v9")
        A("v_add_u32_dpp v15, v7, v7 row_shr:1 row_mask:0xf bank_mask:0xf bound_ctrl:0")
        A("v_sub_u32 v12, v14, v11")
        for k in range(1, 16):
            A(f"v_sub_u32_dpp v{12 + (k&1)}, v14, v11 row_ror:{k} row_mask:0xf bank_mask:0xf")
            A(f"v_alignbit_b32 v10, v10, v{12 + ((k-1)&1)}, 31")
            if k in (2, 4, 6):
                A(f"v_add_u32_dpp v15, v15, v15 row_shr:{ {2:2,4:4,6:8}[k] } row_mask:0xf bank_mask:0xf bound_ctrl:0")
            if k == 8:
                A("v_add_u32_dpp v15, v15, v15 row_bcast:15 row_mask:0xa bank_mask:0xf")
        A("v_alignbit_b32 v10, v10, v13, 31")
        A("v_bcnt_u32_b32 v10, v10, 0")
        A("v_readlane_b32 s40, v15, 31")
        A("v_mov_b32 v12, v10")
        A("s_nop 1")
        A("v_permlane32_swap_b32 v10, v12")
        A("v_add_u32 v10, v10, v12                ; rank")
        A("v_cvt_f32_u32 v13, s40")
        A("v_readlane_b32 s41, v10, s32")
        A(f"v_mul_f32 v13, {hex(f2u(pf_gain*pf_thr/1024))}, v13")
        A("v_cvt_f32_u32 v12, v7")
        A("s_mul_i32 s36, s41, 86")
        A("s_lshr_b32 s36, s36, 8                 ; rank / 3")
        A("s_mul_i32 s44, s36, 3")
        A("s_sub_u32 s44, s41, s44                ; rank % 3")
        A("s_sub_u32 s41, 31, s36")
        A("s_cmp_eq_u32 s35, 1")
        A("s_cselect_b32 s36, 100, s44")
        A("v_cmp_eq_u32 vcc, s41, v10")
        A(f"v_mul_f32 v12, {hex(f2u(pf_gain/32))}, v12")
        A("v_sub_f32 v12, v12, v13")
        A("v_cvt_i32_f32 v12, v12")
        A("v_lshrrev_b32 v13, 5, v7")
        A("v_min_i32 v12, v12, v13")
        A("s_ff1_i32_b32 s41, vcc_lo")
        A("v_readlane_b32 s45, v12, s41")
        A("s_lshl_b32 s43, s41, 9")
        A("v_add_u32 v1, s43, v1")
        A("s_add_u32 s37, s41, s2")
        A("s_and_b32 s37, s37, 7")
        A("s_lshl_b32 s37, s37, 8")
        A("s_add_u32 s36, s36, 1")
        A("s_nop 0")
        A("s_sub_i32 s45, s45, s36")
        A("global_load_dwordx2 v[2:3], v1, s[10:11]")
        A("v_readlane_b32 s38, v7, s32")
        A("v_readlane_b32 s55, v12, s32")
        A("s_getreg_b32 s48, hwreg(HW_REG_XCC_ID, 0, 3)")
        A("v_cvt_f32_u32 v24, s40")
        A("v_rcp_f32 v24, v24")
        A("v_cvt_f32_u32 v25, s38")
        A("s_add_u32 s38, s38, 31")
        A("s_lshr_b32 s38, s38, 5                 ; nt")
        A("s_add_u32 s42, s38, 3")
        A("s_lshr_b32 s42, s42, 2")
        A("s_lshl_b32 s42, s42, 1")
        A("v_mul_f32 v25, v25, v24")
        A(f"v_mul_f32 v25, {hex(f2u(32.0))}, v25")
        A("v_subrev_f32 v24, 1.0, v25")
        A("v_max_f32 v24, 0, v24")
        A("v_mul_f32 v24, v24, v24")
        A(f"v_mov_b32 v26, {hex(f2u(bias*256))}")
        A(f"v_mul_f32 v25, {hex(f2u(alpha*256))}, v25")
        A(f"v_mul_f32 v24, {hex(f2u(quad*256))}, v24")
        A("s_add_i32 s49, s45, 3")
        A("s_max_i32 s49, s49, 0")
        A("v_cvt_f32_u32 v27, s49")
        A("v_add_f32 v26, v26, v25")
        A(f"v_mul_f32 v27, {hex(f2u(hbt*256/3))}, v27")
        A("v_add_f32 v26, v26, v24")
        A("v_add_f32 v26, v26, v27")
        A("s_cmp_eq_u32 s35, 1")
        A(f"s_cselect_b32 s49, {hex(f2u(slow_mul))}, 1.0")
        A("v_mul_f32 v26, s49, v26")
        A("s_bitcmp1_b32 s48, 0")
        A(f"s_mov_b32 s49, {hex(f2u(1.0+par))}")
        A(f"s_cselect_b32 s49, {hex(f2u(1.0-par))}, s49")
        A("v_cvt_f32_u32 v27, s32")
        A("v_mul_f32 v26, s49, v26")
        A(f"v_mul_f32 v27, {hex(f2u(skew/32))}, v27")
        A(f"v_add_f32 v27, {hex(f2u(1.0-skew/2))}, v27")
        A("v_mul_f32 v26, v26, v27")
        A("v_cvt_u32_f32 v30, v26")
        A(f"v_mov_b32 v32, {NBUF}")
        A("s_lshl_b32 s48, s48, 5")
        A("s_add_u32 s49, s48, s32")
        A("v_mov_b32 v17, s49")
        A("v_and_b32 v28, 7, v0")
        A("v_lshlrev_b32 v28, 2, v28")
        A("v_add_u32 v28, s48, v28")
        A("s_max_i32 s55, s55, 0")
        A("s_cmp_eq_u32 s35, 1")
        A("s_cselect_b32 s55, s55, 0")
        A("v_cvt_f32_u32 v12, s38")
        A("v_cvt_f32_u32 v16, s55                 ; e")
        A(f"v_mov_b32 v18, {hex(f2u(hitw - 1.0))}")
        A("v_fma_f32 v12, v16, v18, v12")
        A("v_rcp_f32 v12, v12")
        A(f"s_mul_i32 s46, s42, {256 - int(pub_start*256)}")
        A("s_lshr_b32 s46, s46, 8")
        A(f"s_mul_i32 s50, s42, {256 - int(fb_start*256)}")
        A("s_lshr_b32 s50, s50, 8")
        A("v_mov_b32 v19, -1")
        A("s_mov_b32 s51, 0")
        A("s_sub_u32 s42, s42, 2")
        A("s_barrier")
        A("ds_write_b32 v32, v30")
        A("s_barrier")
        A("s_waitcnt vmcnt(0)")
        A("v_lshlrev_b32 v2, 15, v2")
        A("v_lshlrev_b32 v3, 15, v3")
        A("v_add_u32 v2, s37, v2")
        A("v_add_u32 v3, s37, v3")
        A("L_pf_loop:")
        if fb:
            A("s_cmp_eq_u32 s51, 0")
            A("s_cbranch_scc1 L_pf_nofb")
            A("s_waitcnt vmcnt(0)")
            A("v_msad_u8 v33, v19, v30, 0")
            A("v_sad_u8 v30, v30, 0, 0")
            A("v_lshl_add_u32 v30, v33, 16, v30")
            A("s_nop 1")
            for sh in (1, 2, 4):
                A(f"v_add_u32_dpp v30, v30, v30 row_shr:{sh} row_mask:0xf bank_mask:0xf bound_ctrl:0")
                A("s_nop 1")
            A("v_readlane_b32 s51, v30, 7")
            A("s_nop 3")
            A("s_lshr_b32 s54, s51, 16")
            A("s_and_b32 s51, s51, 0xffff")
            A("s_add_u32 s51, s51, s54")
            A("v_cvt_f32_u32 v33, s51")
            A("v_cvt_f32_u32 v30, s54")
            A("v_rcp_f32 v33, v33")
            A("s_nop 0")
            A("v_mul_f32 v30, v30, v33")
            A(f"v_max_f32 v33, {hex(f2u(fb_dmin))}, v30")
            A("v_rcp_f32 v33, v33")
            A("v_sub_f32 v30, v31, v30")
            A(f"v_mul_f32 v30, {hex(f2u(fb_g))}, v30")
            A("v_fma_f32 v30, v30, v33, 1.0")
            A(f"v_max_f32 v30, {hex(f2u(fb_lo))}, v30")
            A(f"v_min_f32 v30, {hex(f2u(fb_hi))}, v30")
            A("v_mul_f32 v30, v30, v26")
            if endboost:
                A(f"s_cmp_le_u32 s42, {endleft}")
                A(f"s_cselect_b32 s54, {hex(f2u(endboost*256))}, 0")
                A("v_add_f32 v30, s54, v30")
            A("v_cvt_u32_f32 v30, v30")
            A("ds_write_b32 v32, v30")
            A("s_mov_b32 s51, 0")
            A("L_pf_nofb:")
        A("s_max_i32 s47, s45, 0")
        A("s_lshl_b32 s54, s42, 1")
        A("v_cvt_f32_u32 v15, s54")
        A("v_readlane_b32 s52, v2, s47")
        A("v_readlane_b32 s53, v3, s47")
        A(f"v_subrev_f32 v14, {hex(f2u(pub_off/2))}, v15")
        A("v_min_f32 v13, v15, v16")
        A("v_fma_f32 v15, v13, v18, v15")
        A("v_min_f32 v13, v14, v16")
        A("v_fma_f32 v14, v13, v18, v14")
        A("v_mul_f32 v14, v14, v12")
        A(f"v_mov_b32 v13, {hex(f2u(255.5))}")
        A(f"v_mul_f32 v14, {hex(f2u(-255.0))}, v14")
        A("v_add_f32 v14, v14, v13")
        A("v_min_f32 v14, v14, v13")
        A("v_cvt_u32_f32 v14, v14")
        if fb:
            A("s_cmp_gt_u32 s42, s46")
            A("s_cbranch_scc1 L_pf_nopub")
            A("s_mov_b64 exec, 1")
            A("global_store_byte v17, v14, s[30:31]")
            A("s_mov_b64 exec, -1")
            A("s_cmp_gt_u32 s42, s50")
            A("s_cbranch_scc1 L_pf_nopub")
            A("s_waitcnt lgkmcnt(0)")
            A(f"global_load_dword v30, v28, s[30:31] {pollf}")
            if own_off: A(f"v_add_f32 v15, {hex(f2u(own_off))}, v15")
            A("v_mul_f32 v31, v15, v12")
            A("s_mov_b32 s51, 1")
            A("L_pf_nopub:")
        A("s_cmp_lt_i32 s45, 0")
        if fb:
            A("s_cbranch_scc1 L_pf_nov")
        else:
            A("s_cbranch_scc1 L_pf_exit")
        A("s_nop 1")
        A(f"buffer_load_dword v20, v8, s[16:19], s52 offen {pf_flags}")
        A(f"buffer_load_dword v21, v8, s[16:19], s53 offen {pf_flags}")
        A("s_waitcnt vmcnt(0)")
        A(f"buffer_load_dword v22, v8, s[24:27], s52 offen {pf_flags}")
        A(f"buffer_load_dword v23, v8, s[24:27], s53 offen {pf_flags}")
        A("s_sub_i32 s45, s45, 3")
        A("L_pf_nov:")
        A("s_cmp_le_i32 s42, 1")
        A("s_cbranch_scc1 L_pf_exit")
        A("s_sub_u32 s42, s42, 1")
        A("s_barrier")
        A("s_branch L_pf_loop")
        A("L_pf_exit:")
        A("s_endpgm")

    P0, S0, O0, Q0, F0, B0, X0, KA = 40, 48, 64, 80, 112, 144, 176, 16
    VA0, VA1, vM, vL = 24, 25, 28, 29
    vPW, vPR, vMW, vMR = 4, 5, 6, 7
    A("L_consumer:")
    A("s_sub_u32 s34, s34, 1                  ; cw")
    A("v_and_b32 v1, 31, v0")
    A("v_lshrrev_b32 v2, 5, v0                ; hf")
    A("s_lshl_b32 s35, s32, 16")
    A("s_lshl_b32 s36, s33, 13")
    A("s_add_u32 s35, s35, s36")
    A("v_lshlrev_b32 v3, 8, v1")
    A("v_lshl_add_u32 v3, v2, 4, v3")
    A("v_add_u32 v3, s35, v3")
    A("s_lshl_b32 s36, s32, 2")
    A("s_waitcnt lgkmcnt(0)")
    A("s_load_dword s37, s[12:13], s36")
    if not qdma:
        for kk in range(8):
            A(f"global_load_dwordx4 v[{Q0+4*kk}:{Q0+4*kk+3}], v3, s[4:5] offset:{32*kk} {qflags}")
    A("s_lshl_b32 s46, s34, 13                ; cw*8192")
    A("v_and_b32 v8, 3, v0")
    A("v_bfe_u32 v9, v0, 2, 2")
    A("v_lshl_add_u32 v10, v8, 2, v9          ; g")
    A("v_xor_b32 v10, v10, v2")
    A("v_lshlrev_b32 v10, 4, v10")
    A("v_lshl_add_u32 v10, v1, 8, v10")
    A(f"v_add_u32 v{KA}, s46, v10")
    if qdma:
        A(f"v_add_u32 v{S0}, {QBUF}, v10")
        for kk in range(1, 8):
            A(f"v_xor_b32 v{S0+kk}, {32*kk}, v{S0}")
    for kk in range(1, 8):
        A(f"v_xor_b32 v{KA+kk}, {32*kk}, v{KA}")
    A("v_lshl_add_u32 v10, v2, 2, v9")
    A("v_lshlrev_b32 v10, 8, v10")
    A("v_xor_b32 v11, s34, v9")
    A("v_lshl_add_u32 v10, v11, 6, v10")
    A("v_bfe_u32 v11, v0, 4, 1")
    A("v_bfe_u32 v12, v0, 1, 1")
    A("v_lshl_add_u32 v11, v11, 1, v12")
    A("v_xor_b32 v11, v11, v2")
    A("v_lshl_add_u32 v10, v11, 4, v10")
    A("v_and_b32 v11, 1, v0")
    A(f"v_lshl_add_u32 v{VA0}, v11, 3, v10")
    A(f"v_xor_b32 v{VA1}, 32, v{VA0}")
    A("v_lshlrev_b32 v10, 4, v0")
    A(f"v_add_u32 v{vPR}, {PBUF}, v10")
    A("s_lshl_b32 s47, s34, 11")
    A(f"v_add_u32 v{vPW}, s47, v{vPR}")
    A("v_lshlrev_b32 v11, 5, v1")
    A(f"v_add_u32 v{vMR}, {MBUF}, v11")
    A("s_lshl_b32 s47, s34, 3")
    A(f"v_lshl_add_u32 v{vMW}, v2, 2, v{vMR}")
    A(f"v_add_u32 v{vMW}, s47, v{vMW}")
    for i in range(16):
        A(f"v_mov_b32 v{O0+i}, 0")
    A(f"v_mov_b32 v{vM}, {hex(f2u(-1e30))}")
    A(f"v_mov_b32 v{vL}, 0")
    A("v_mov_b32 v15, 0xff800000")
    A("s_lshl_b32 s47, s34, 6")
    if otr:
        A("s_add_u32 s47, s47, s35")
        A("v_lshrrev_b32 v36, 2, v0")
        A("v_and_b32 v37, 3, v0")
        A("v_lshlrev_b32 v3, 8, v36")
        A("v_lshl_add_u32 v3, v37, 4, v3")
        A("v_add_u32 v3, s47, v3")
        A("s_lshl_b32 s47, s34, 11")
        A(f"s_add_u32 s47, s47, {QBUF}")
        A("v_bfe_u32 v38, v0, 3, 2                ; (row>>1)&3")
        A("v_xor_b32 v37, v37, v38")
        A("v_lshlrev_b32 v37, 4, v37")
        A("v_lshl_add_u32 v37, v36, 6, v37")
        A("v_add_u32 v13, s47, v37")
        A("v_bfe_u32 v38, v0, 1, 2                ; (q>>1)&3")
        A("v_lshlrev_b32 v38, 4, v38")
        A("v_lshl_add_u32 v38, v1, 6, v38")
        A("v_lshl_add_u32 v38, v2, 3, v38")
        A("v_add_u32 v36, s47, v38")
        A("v_xor_b32 v37, 16, v36")
        A("v_xor_b32 v38, 32, v36")
        A("v_xor_b32 v12, 48, v36")
    else:
        A("v_add_u32 v3, s47, v3")
    if poison:
        A("v_mov_b32 v32, -1"); A("v_mov_b32 v33, -1"); A("v_mov_b32 v34, -1"); A("v_mov_b32 v35, -1")
        A("v_add_u32 v11, s46, v10")
        A("v_add_u32 v11, 0x10000, v11")
        for i in range(8):
            A(f"ds_write_b128 v11, v[32:35] offset:{1024*i}")
    A("s_waitcnt lgkmcnt(0)")
    A(f"s_mov_b32 s48, {hex(f2u(128**-0.5*math.log2(math.e)))}")
    A("s_cmp_gt_i32 s37, 0")
    A("s_cselect_b32 s48, s48, 0")
    A("s_cselect_b32 s37, s37, 2048")
    A("s_min_i32 s37, s37, 2048")
    A("s_add_u32 s38, s37, 31")
    A("s_lshr_b32 s38, s38, 5                 ; nt")
    A("s_sub_u32 s40, s38, 1")
    A("s_and_b32 s41, s40, 3")
    A("s_add_u32 s41, s41, 1                  ; m")
    A("s_add_u32 s42, s38, 3")
    A("s_lshr_b32 s42, s42, 2")
    A("s_lshl_b32 s40, s40, 5")
    A("s_sub_u32 s40, s37, s40")
    A("s_cmp_eq_u32 s34, 0")
    A("s_cselect_b32 s40, s40, 64")
    A("s_cmp_lt_u32 s34, s41")
    A("s_cselect_b32 s40, s40, 0")
    A("v_lshlrev_b32 v14, 2, v2")
    A("v_sub_u32 v14, s40, v14                ; thr")
    A("s_cbranch_scc1 L_active")
    A("v_add_u32 v11, s46, v10")
    A("v_add_u32 v11, 0x10000, v11")
    for i in range(8):
        A(f"ds_write_b128 v11, v[{O0}:{O0+3}] offset:{1024*i}")
    A("L_active:")
    A("s_mov_b32 s43, 1")
    A("s_mov_b32 s44, 0x8000")
    A("s_mov_b32 s45, 0")
    A("s_waitcnt vmcnt(0) lgkmcnt(0)")
    A("s_barrier")
    if stamps:
        A("s_memrealtime s[62:63]")
        A("s_waitcnt lgkmcnt(0)")
    if qdma:
        for kk in range(8):
            A(f"ds_read_b128 v[{Q0+4*kk}:{Q0+4*kk+3}], v{S0+kk}")
    A("s_branch L_X")
    def e_ops():
        L = []
        L.append(f"v_max3_f32 v30, v{X0}, v{X0+1}, v{X0+2}")
        L.append(f"v_max3_f32 v31, v{X0+3}, v{X0+4}, v{X0+5}")
        L.append(f"v_max3_f32 v30, v30, v{X0+6}, v{X0+7}")
        L.append(f"v_max3_f32 v30, v30, v31, v{vM}        ; m_new")
        L.append(f"v_sub_f32 v31, v{vM}, v30")
        L.append("v_mul_f32 v32, s48, v30                ; mc")
        L.append("v_mul_f32 v31, s48, v31")
        L.append(f"v_mov_b32 v{vM}, v30")
        L.append("v_exp_f32 v34, v31                     ; alpha")
        for g in range(4):
            for v in range(4*g, 4*g+4):
                L.append(f"v_fma_f32 v{S0+v}, v{S0+v}, s48, -v32")
            if g == 0: L.append(f"v_mul_f32 v{vL}, v{vL}, v34")
            for v in range(4*g, 4*g+4):
                L.append(f"v_exp_f32 v{S0+v}, v{S0+v}")
            if g:
                p = g - 1
                L.append(f"v_cvt_pk_bf16_f32 v{P0+2*p}, v{S0+4*p}, v{S0+4*p+1}")
                L.append(f"v_cvt_pk_bf16_f32 v{P0+2*p+1}, v{S0+4*p+2}, v{S0+4*p+3}")
                if p == 1: L.append(f"ds_write_b128 v{vPW}, v[{P0}:{P0+3}]")
                L.append(f"v_add_f32 v30, v{S0+4*p}, v{S0+4*p+1}")
                L.append(f"v_add_f32 v31, v{S0+4*p+2}, v{S0+4*p+3}")
                L.append(f"v_add_f32 v{vL}, v{vL}, v30")
                L.append(f"v_add_f32 v{vL}, v{vL}, v31")
        L.append(f"v_cvt_pk_bf16_f32 v{P0+6}, v{S0+12}, v{S0+13}")
        L.append(f"v_cvt_pk_bf16_f32 v{P0+7}, v{S0+14}, v{S0+15}")
        L.append(f"ds_write_b128 v{vPW}, v[{P0+4}:{P0+7}] offset:1024")
        L.append(f"v_add_f32 v30, v{S0+12}, v{S0+13}")
        L.append(f"v_add_f32 v31, v{S0+14}, v{S0+15}")
        L.append(f"v_add_f32 v{vL}, v{vL}, v30")
        L.append(f"v_add_f32 v{vL}, v{vL}, v31")
        return L
    def rdP(i): return f"ds_read_b128 v[{B0+4*i}:{B0+4*i+3}], v{vPR} offset:{2048*(i>>1) + 1024*(i&1)}"
    def rdV(i):
        r = F0 + 4*i
        return [f"ds_read_b64_tr_b16 v[{r}:{r+1}], v26 offset:{8192*(i>>1) + 4096*(i&1)}",
                f"ds_read_b64_tr_b16 v[{r+2}:{r+3}], v27 offset:{8192*(i>>1) + 4096*(i&1) + 2048}"]
    def rdX(): return [f"ds_read_b128 v[{X0}:{X0+3}], v{vMR}", f"ds_read_b128 v[{X0+4}:{X0+7}], v{vMR} offset:16"]
    def mm(i):
        r = F0 + 4*i
        return f"v_mfma_f32_32x32x16_bf16 v[{O0}:{O0+15}], v[{r}:{r+3}], v[{B0+4*i}:{B0+4*i+3}], v[{O0}:{O0+15}]"
    def vaddr():
        A("s_add_u32 s45, s45, 1")
        A("s_and_b32 s47, s45, 3")
        A("s_lshl_b32 s47, s47, 15")
        A(f"v_add_u32 v26, s47, v{VA0}")
        A(f"v_add_u32 v27, s47, v{VA1}")
    A("L_E0:")
    for x in rdX(): A(x)
    A("s_waitcnt lgkmcnt(0)")
    for x in e_ops(): A(x)
    A("s_branch L_tail")
    A("L_XB:")
    A("s_waitcnt lgkmcnt(0)")
    A("s_barrier")
    A("s_add_u32 s45, s45, 1")
    A("L_X:")
    for kk in range(8):
        A(f"ds_read_b128 v[{F0+4*kk}:{F0+4*kk+3}], v{KA+kk}")
    for kk in range(8):
        A(f"s_waitcnt lgkmcnt({7-kk})")
        c = "0" if kk == 0 else f"v[{S0}:{S0+15}]"
        A(f"v_mfma_f32_32x32x16_bf16 v[{S0}:{S0+15}], v[{F0+4*kk}:{F0+4*kk+3}], v[{Q0+4*kk}:{Q0+4*kk+3}], {c}")
    for i in range(8): A(f"v_xor_b32 v{KA+i}, s44, v{KA+i}")
    A("s_mov_b32 s44, 0x10000")
    vaddr()
    A("s_cmp_eq_u32 s43, 0")
    A("s_cbranch_scc1 L_nomask")
    for v in range(16):
        A(f"v_cmp_lt_i32 vcc, {8*(v>>2)+(v&3)}, v14")
        A("s_nop 1")
        A(f"v_cndmask_b32 v{S0+v}, v15, v{S0+v}, vcc")
    A("L_nomask:")
    A(f"v_max3_f32 v30, v{S0}, v{S0+1}, v{S0+2}")
    A(f"v_max3_f32 v31, v{S0+3}, v{S0+4}, v{S0+5}")
    A(f"v_max3_f32 v30, v30, v{S0+6}, v{S0+7}")
    A(f"v_max3_f32 v31, v31, v{S0+8}, v{S0+9}")
    A(f"v_max3_f32 v30, v30, v{S0+10}, v{S0+11}")
    A(f"v_max3_f32 v31, v31, v{S0+12}, v{S0+13}")
    A(f"v_max3_f32 v30, v30, v{S0+14}, v{S0+15}")
    A("v_max_f32 v30, v30, v31")
    A(f"ds_write_b32 v{vMW}, v30")
    A(f"v_xor_b32 v{vMW}, 0x400, v{vMW}")
    A("s_mov_b32 s43, 0")
    A("s_waitcnt lgkmcnt(0)")
    A("s_barrier")
    A("s_cbranch_scc0 L_E0")
    seq = []
    lds_issued = 0
    done_at = {}
    def emit_lds(x, tag=None):
        nonlocal lds_issued
        A(x); lds_issued += 1
        if tag is not None: done_at[tag] = lds_issued
    for x in rdX(): emit_lds(x, "X")
    AH = 4
    for i in range(AH):
        emit_lds(rdP(i)); v = rdV(i); emit_lds(v[0]); emit_lds(v[1], i)
    E = e_ops()
    ei = 0
    A(f"s_waitcnt lgkmcnt({lds_issued - done_at['X']})")
    pre = 9
    def take(n):
        nonlocal ei
        k = 0
        while ei < len(E) and k < n:
            x = E[ei]; ei += 1
            if x.startswith("ds_"): emit_lds(x)
            else: A(x)
            k += 2 if x.startswith("v_exp") else 1
    take(pre)
    for i in range(8):
        A(f"s_waitcnt lgkmcnt({lds_issued - done_at[i]})")
        A(mm(i))
        if i + AH < 8:
            emit_lds(rdP(i+AH)); v = rdV(i+AH); emit_lds(v[0]); emit_lds(v[1], i+AH)
        if i < 7: take(egap)
    rest = len(E) - ei
    take(1000)
    A(f"v_xor_b32 v{vPR}, 0x2000, v{vPR}")
    pad = 12 - rest - 1
    if pad > 0: A(f"s_nop {pad-1}")
    for i in range(0, 16, 2):
        A(f"v_pk_mul_f32 v[{O0+i}:{O0+i+1}], v[{O0+i}:{O0+i+1}], v[34:35] op_sel_hi:[1,0]")
    A("L_tail:")
    A(f"v_xor_b32 v{vMR}, 0x400, v{vMR}")
    A(f"v_xor_b32 v{vPW}, 0x2000, v{vPW}")
    A("s_sub_u32 s42, s42, 1")
    A("s_cmp_eq_u32 s42, 0")
    A("s_cbranch_scc1 L_last")
    A("s_cmp_eq_u32 s45, 1")
    A("s_cbranch_scc1 L_X")
    A("s_branch L_XB")
    A("L_last:")
    A(f"v_or_b32 v{vMW}, 0x400, v{vMW}")
    A(f"v_or_b32 v{vMR}, 0x400, v{vMR}")
    A(f"ds_write_b32 v{vMW}, v{vL} offset:1024")
    A(f"v_add_u32 v{vMR}, 1024, v{vMR}")
    vaddr()
    A("s_waitcnt lgkmcnt(0)")
    A("s_barrier")
    NF = 8 - 2*split
    lds_issued = 0; done_at = {}
    for i in range(AH):
        emit_lds(rdP(i)); v = rdV(i); emit_lds(v[0]); emit_lds(v[1], i)
    extra = False
    for i in range(NF):
        A(f"s_waitcnt lgkmcnt({lds_issued - done_at[i]})")
        A(mm(i))
        if i + AH < NF:
            emit_lds(rdP(i+AH)); v = rdV(i+AH); emit_lds(v[0]); emit_lds(v[1], i+AH)
        elif not extra:
            for k in range(NF, 8): emit_lds(rdP(k))
            for x in rdX(): emit_lds(x)
            extra = True
    A("s_waitcnt lgkmcnt(0)")
    A(f"v_add_f32 v30, v{X0}, v{X0+1}")
    A(f"v_add_f32 v31, v{X0+2}, v{X0+3}")
    A(f"v_add_f32 v32, v{X0+4}, v{X0+5}")
    A(f"v_add_f32 v33, v{X0+6}, v{X0+7}")
    A("v_add_f32 v30, v30, v31")
    A("v_add_f32 v32, v32, v33")
    A("v_add_f32 v30, v30, v32")
    A("v_rcp_f32 v34, v30")
    if split:
        A("s_barrier")
        for k in range(NF, 8):
            for x in rdV(k): A(x)
        for k in range(NF, 8):
            A(f"s_waitcnt lgkmcnt({2*(7-k)})")
            A(mm(k))
        A("s_nop 9")
    else:
        A("s_nop 0")
    if stamps:
        A("s_memrealtime s[64:65]")
    A("s_nop 1")
    if otr:
        for i in range(4):
            for k in (0, 2):
                r = O0 + 4*i + k
                A(f"v_pk_mul_f32 v[{r}:{r+1}], v[{r}:{r+1}], v[34:35] op_sel_hi:[1,0]")
            A(f"v_cvt_pk_bf16_f32 v{P0+2*i}, v{O0+4*i}, v{O0+4*i+1}")
            A(f"v_cvt_pk_bf16_f32 v{P0+2*i+1}, v{O0+4*i+2}, v{O0+4*i+3}")
            A(f"ds_write_b64 v{(36,37,38,12)[i]}, v[{P0+2*i}:{P0+2*i+1}]")
        A(f"ds_read_b128 v[{S0}:{S0+3}], v13")
        A(f"ds_read_b128 v[{S0+4}:{S0+7}], v13 offset:1024")
        A("v_add_u32 v30, 4096, v3")
        A("s_waitcnt lgkmcnt(1)")
        A(f"global_store_dwordx4 v3, v[{S0}:{S0+3}], s[14:15] {oflags}")
        A("s_waitcnt lgkmcnt(0)")
        A(f"global_store_dwordx4 v30, v[{S0+4}:{S0+7}], s[14:15] {oflags}")
    else:
        for i in range(0, 16, 2):
            A(f"v_pk_mul_f32 v[{O0+i}:{O0+i+1}], v[{O0+i}:{O0+i+1}], v[34:35] op_sel_hi:[1,0]")
        for i in range(8):
            A(f"v_cvt_pk_bf16_f32 v{P0+i}, v{O0+2*i}, v{O0+2*i+1}")
        A(f"v_permlane32_swap_b32 v{P0}, v{P0+2}")
        A(f"v_permlane32_swap_b32 v{P0+1}, v{P0+3}")
        A(f"global_store_dwordx4 v3, v[{P0}:{P0+3}], s[14:15] {oflags}")
        A(f"v_permlane32_swap_b32 v{P0+4}, v{P0+6}")
        A(f"v_permlane32_swap_b32 v{P0+5}, v{P0+7}")
        A(f"global_store_dwordx4 v3, v[{P0+4}:{P0+7}], s[14:15] offset:32 {oflags}")
    if stamps:
        A("s_add_u32 s34, s34, 1")
        A("s_waitcnt vmcnt(0)")
        A("L_stamp:")
        A("s_memrealtime s[66:67]")
        A("s_mul_i32 s35, s2, 5"); A("s_add_u32 s35, s35, s34"); A("s_lshl_b32 s35, s35, 5")
        A("s_waitcnt lgkmcnt(0)")
        A("v_mov_b32 v12, s60"); A("v_mov_b32 v13, s61"); A("v_mov_b32 v14, s66"); A("v_mov_b32 v15, s67")
        A("v_mov_b32 v20, s62"); A("v_mov_b32 v21, s63"); A("v_mov_b32 v22, s64"); A("v_mov_b32 v23, s65")
        A("v_mov_b32 v16, s35")
        A("v_cmp_eq_u32 vcc, 0, v0")
        A("s_and_saveexec_b64 s[46:47], vcc")
        A("global_store_dwordx4 v16, v[12:15], s[68:69]")
        A("global_store_dwordx4 v16, v[20:23], s[68:69] offset:16")
        A("s_waitcnt vmcnt(0)")
    A("L_end:")
    A("s_endpgm")
    A('.section .rodata,"a"')
    A(".p2align 6")
    A(f".amdhsa_kernel {NAME}_kernel")
    A("  .amdhsa_next_free_vgpr 184")
    A("  .amdhsa_next_free_sgpr 88")
    A("  .amdhsa_accum_offset 184")
    A("  .amdhsa_group_segment_fixed_size 0")
    A("  .amdhsa_kernarg_size 64")
    A("  .amdhsa_user_sgpr_count 2")
    A("  .amdhsa_user_sgpr_kernarg_segment_ptr 1")
    A("  .amdhsa_system_sgpr_workgroup_id_x 1")
    A(".end_amdhsa_kernel")
    return "\n".join(o) + "\n"

if __name__ == "__main__":
    out = sys.argv[1]
    kw = {}
    for a in sys.argv[2:]:
        k, v = a.split("=", 1)
        try: v = json.loads(v)
        except Exception: pass
        kw[k] = v
    open(out, "w").write(gen(**kw))
```

```python
import sys, struct, math, json
NAME = "standalone__paged_block_table_kv_pagedattention__sampling"
KBYTES = 4100*32768
def f2u(x): return struct.unpack("<I", struct.pack("<f", x))[0]
def F(x): return hex(f2u(x))
HEADER = open("cdna_kernels/%s.s.ref" % NAME).read().split("; Override")[0]

PBUF = 131072
MBUF = PBUF + 16384
LBUF = MBUF + 2048
QBUF = LBUF + 1024
NBUF = QBUF + 8192
LDS_TOTAL = NBUF + 256

DOC = """; Design
;   The aux wave and d_debug only influence speed, never the result."""

def gen(nlo=8, nhi=34, nstep=2, n0=24, alpha=27.0, bias=-5.0, par=0.01, prior=20,
        pf_thr=0.96, pf_gain=1.8, hitw=0.55, space=3,
        fb_g=1.3, fb_dmin=0.15, fb_lo=0.8, fb_hi=1.25, fb_start=0.3, pub_start=0.2, pub_off=2.0,
        egap=8, stamps=False, valign=6, first_align=0, shift=0):
    o = []
    A = o.append
    A(HEADER.rstrip())
    A(f"; @launch grid=(256,1,1) block=(384,1,1) lds={LDS_TOTAL}")
    A(DOC)
    A('.amdgcn_target "amdgcn-amd-amdhsa--gfx950"')
    A(".text")
    A(f".globl {NAME}_kernel")
    A(".p2align 8")
    A(f".type {NAME}_kernel,@function")
    A(f"{NAME}_kernel:")
    A("s_load_dwordx8 s[4:11], s[0:1], 0")
    A("s_load_dwordx4 s[12:15], s[0:1], 32")
    A("s_load_dwordx2 s[30:31], s[0:1], 48    ; debug")
    A("s_cmp_ge_u32 s2, 256")
    A("s_cbranch_scc1 L_end")
    if stamps:
        A("s_memrealtime s[60:61]")
        A("s_load_dwordx2 s[68:69], s[0:1], 56")
    A("s_getpc_b64 s[28:29]")
    A("L_pc0:")
    A("v_subrev_u32 v2, 64, v0")
    A("v_lshlrev_b32 v2, 7, v2")
    A("v_cmp_gt_u32 vcc, L_end-L_pc0, v2")
    A("s_and_saveexec_b64 s[36:37], vcc")
    A("s_cbranch_execz L_nocpf")
    A("global_load_dword v39, v2, s[28:29]")
    A("L_nocpf:")
    A("s_mov_b64 exec, -1")
    A("s_lshr_b32 s32, s2, 3                  ; b")
    A("s_add_u32 s33, s2, s32")
    A("s_and_b32 s33, s33, 7                  ; h = (id + b) & 7")
    A("v_lshrrev_b32 v1, 6, v0")
    A("v_and_b32 v0, 63, v0                   ; lane")
    A("v_readfirstlane_b32 s34, v1            ; wave")
    A("s_lshl_b32 s35, s32, 9")
    A("v_lshlrev_b32 v1, 3, v0")
    A("s_cmp_lg_u32 s34, 0")
    A("s_cbranch_scc1 L_notloader")

    A("; ================================================================ loader")
    A("s_setprio 3")
    A("v_add_u32 v1, s35, v1")
    A("s_lshl_b32 s35, s32, 2")
    A("v_lshrrev_b32 v4, 4, v0")
    A("v_and_b32 v5, 15, v0")
    A("v_lshlrev_b32 v16, 2, v4")
    A("v_xor_b32 v16, v5, v16")
    A("v_lshlrev_b32 v16, 4, v16")
    A("v_lshl_add_u32 v12, v4, 8, v16")
    for j in range(1, 4):
        A(f"v_xor_b32 v{12+j}, {16*j}, v12")
    A("s_lshl_b32 s52, s32, 3")
    A("s_add_u32 s52, s52, s33")
    A("s_lshl_b32 s52, s52, 13")
    A("s_add_u32 s53, s52, 4096")
    A(f"s_mov_b32 s26, {32*32*8*128*2}")
    A("s_mov_b32 s27, 0x20000")
    A(f"s_mov_b32 m0, {QBUF}")
    A("s_waitcnt lgkmcnt(0)")
    A("global_load_dwordx2 v[2:3], v1, s[10:11]")
    A("s_load_dword s37, s[12:13], s35")
    if stamps: A("s_memrealtime s[62:63]")
    A("s_mov_b32 s24, s4"); A("s_mov_b32 s25, s5")
    for j in range(8):
        if j == 4:
            A("s_add_u32 m0, m0, 4096"); A("s_nop 0")
        A(f"buffer_load_dwordx4 v{12 + (j&3)}, s[24:27], s{52 + j//4} offen offset:{1024*(j&3)} nt lds")
    for base in (16, 20):
        A(f"s_mov_b32 s{base}, s6"); A(f"s_mov_b32 s{base+1}, s7")
        A(f"s_mov_b32 s{base+2}, {KBYTES}"); A(f"s_mov_b32 s{base+3}, 0x20000")
    A("v_lshl_add_u32 v8, v4, 11, v16")
    for j in range(1, 4):
        A(f"v_xor_b32 v{8+j}, {16*j}, v8")
        A(f"v_add_u32 v{8+j}, {(8192-1024)*j}, v{8+j}")
    A("v_lshlrev_b32 v21, 5, v0")
    A("s_lshl_b32 s36, s33, 8                 ; h*256")
    A(f"s_mov_b32 s59, {KBYTES}")
    A("s_mov_b32 s42, 0")
    A("s_mov_b32 s56, 0")
    A("s_mov_b32 s54, 128")
    A("s_mov_b32 s49, 0")
    A(f"v_mov_b32 v32, {NBUF}")
    A("s_waitcnt lgkmcnt(0)")
    A("s_cmp_gt_i32 s37, 0")
    A("s_cselect_b32 s37, s37, 2048")
    A("s_min_i32 s37, s37, 2048")
    A("v_sub_u32 v21, s37, v21")
    A("s_sub_u32 s48, s37, 1")
    A("s_lshr_b32 s48, s48, 5")
    A("v_med3_i32 v4, v21, 0, 16")
    A("v_subrev_u32 v21, 16, v21")
    A("v_med3_i32 v5, v21, 0, 16")
    A("s_and_b32 s41, s48, 3")
    A("s_add_u32 s41, s41, 1")
    A("s_mov_b32 s50, s41")
    A("s_mov_b32 s46, s41")
    A("s_mul_i32 s39, s37, 9")
    A("s_lshr_b32 s39, s39, 1")
    A("s_sub_i32 s39, s39, 1280")
    A(f"s_max_i32 s39, s39, {prior*256}")
    A("v_mov_b32 v33, s39")
    A("s_waitcnt vmcnt(8)")
    if stamps: A("s_memrealtime s[64:65]")
    A("v_lshlrev_b32 v2, 15, v2")
    A("v_lshlrev_b32 v3, 15, v3")
    A("v_lshl_add_u32 v4, v4, 11, v2")
    A("v_lshl_add_u32 v5, v5, 11, v3")
    A("v_add_u32 v2, s36, v2")
    A("v_min_u32 v4, s59, v4")
    A("v_add_u32 v3, s36, v3")
    A("v_min_u32 v5, s59, v5")
    A("ds_write_b32 v32, v33")
    Ns = list(range(nlo, nhi+1, nstep))
    assert n0 in Ns
    def version(NN, fall=False):
        q, p = (NN-1) // 8, (NN-1) % 8
        if valign and not fall:
            A(f".p2align {valign}")
            for _ in range(shift): A("s_nop 0")
        if first_align and fall: A(f".p2align {first_align}")
        A(f"L_ld{NN}:")
        A("v_readlane_b32 s52, v2, s48")
        A("v_readlane_b32 s18, v4, s48")
        A("v_readlane_b32 s53, v3, s48")
        A("v_readlane_b32 s22, v5, s48")
        A("s_mov_b32 m0, s49")
        A("s_sub_u32 s48, s48, 1")
        A("s_add_u32 s49, s49, 8192")
        A(f"s_sub_i32 s51, s42, {q}")
        A("s_add_u32 s42, s42, 1")
        for j in range(8):
            if j == 4: A("s_add_u32 m0, m0, 4096")
            if j == 6: A("ds_read_b32 v33, v32")
            if j == p: A("s_cmp_lt_i32 s51, s46")
            A(f"s_waitcnt vmcnt({NN-1})")
            if j == p:
                A(f"s_cbranch_scc1 L_ld{NN}_np")
                A("s_barrier")
                A("s_add_u32 s43, s43, s44")
                A(f"s_add_u32 s51, s51, {space}")
                A("s_max_i32 s46, s43, s51")
                A("s_mov_b32 s44, s45")
                A("s_mov_b32 s45, 4")
                A(f"L_ld{NN}_np:")
            srd = 16 if j < 4 else 20
            A(f"buffer_load_dwordx4 v{8 + (j&3)}, s[{srd}:{srd+3}], s{52 + j//4} offen offset:{1024*(j&3)} nt lds")
        A("s_sub_u32 s50, s50, 1")
        A("s_cmp_lg_u32 s50, 0")
        A(f"s_cbranch_scc1 L_ld{NN}")
        if not fall: A("s_branch L_next")
    version(n0, fall=True)
    A("s_cmp_lg_u32 s56, 0")
    A("s_cbranch_scc1 L_next")
    A("s_mov_b32 s40, s48")
    A("s_add_u32 s55, s48, s41")
    A("s_mov_b32 s58, s41")
    A("s_mov_b32 s43, s41")
    A("s_cmp_ge_i32 s40, 0")
    A("s_cselect_b32 s44, 4, 0")
    A("s_mov_b32 s45, s41")
    A("s_add_u32 s47, s55, 1")
    A("s_lshl_b32 s47, s47, 1")
    A("L_next:")
    A("s_waitcnt lgkmcnt(0)")
    A("v_readfirstlane_b32 s39, v33")
    A("L_next2:")
    A("s_add_u32 s56, s56, 1")
    A("s_cmp_lt_i32 s55, 0")
    A("s_cbranch_scc1 L_drain")
    A("s_and_b32 s49, s56, 3")
    A("s_lshl_b32 s49, s49, 15")
    A("s_bitcmp1_b32 s56, 0")
    A("s_cbranch_scc0 L_setV")
    A("s_cmp_ge_i32 s40, 0")
    A("s_cbranch_scc1 L_setK")
    A("s_cmp_eq_u32 s56, 1")
    A("s_cbranch_scc1 L_next2")
    A("L_setV:")
    A("s_mov_b32 s16, s8"); A("s_mov_b32 s17, s9"); A("s_mov_b32 s20, s8"); A("s_mov_b32 s21, s9")
    A("s_mov_b32 s48, s55")
    A("s_mov_b32 s50, s58")
    A("s_sub_i32 s55, s55, s58")
    A("s_mov_b32 s58, 4")
    A("s_branch L_disp")
    A("L_setK:")
    A("s_mov_b32 s16, s6"); A("s_mov_b32 s17, s7"); A("s_mov_b32 s20, s6"); A("s_mov_b32 s21, s7")
    A("s_mov_b32 s48, s40")
    A("s_mov_b32 s50, 4")
    A("s_sub_i32 s40, s40, 4")
    A("L_disp:")
    A("s_add_u32 s54, s54, s39")
    A("s_lshr_b32 s57, s54, 8")
    A(f"s_and_b32 s54, s54, {256*nstep-1}")
    def dispatch(lst):
        if len(lst) == 1:
            A(f"s_branch L_ld{lst[0]}")
            return
        mid = len(lst)//2
        lab = f"L_disp{lst[mid]}_{lst[-1]}"
        A(f"s_cmp_ge_u32 s57, {lst[mid]}")
        if len(lst) - mid == 1:
            A(f"s_cbranch_scc1 L_ld{lst[mid]}")
            dispatch(lst[:mid])
        else:
            A(f"s_cbranch_scc1 {lab}")
            dispatch(lst[:mid])
            A(f"{lab}:")
            dispatch(lst[mid:])
    dispatch(Ns)
    for NN in Ns:
        if NN != n0: version(NN)
    A("L_drain:")
    A("s_sub_i32 s51, s47, s43")
    for c in range(6, 0, -1):
        A(f"L_drain{c}:")
        A(f"s_cmp_lt_i32 s51, {c}")
        A(f"s_cbranch_scc1 L_drain{c}_n")
        A(f"s_waitcnt vmcnt({8*c})")
        A("s_barrier")
        A("s_sub_i32 s51, s51, s44")
        A("s_mov_b32 s44, s45")
        A("s_mov_b32 s45, 4")
        A(f"s_branch L_drain{c}")
        A(f"L_drain{c}_n:")
    A("s_cmp_gt_u32 s47, 8")
    A("s_cbranch_scc1 L_last3")
    A("s_waitcnt vmcnt(0)")
    A("L_last3:")
    A("s_waitcnt vmcnt(8)")
    A("s_barrier")
    A("s_waitcnt vmcnt(0)")
    A("s_barrier")
    if stamps:
        A("s_branch L_stamp")
    A("s_endpgm")

    A("L_notloader:")
    A("s_cmp_lt_u32 s34, 5")
    A("s_cbranch_scc1 L_consumer")
    A("s_and_b32 s35, s33, 3")
    A("v_and_b32 v6, 31, v0")
    A("v_lshrrev_b32 v9, 5, v0")
    A("v_lshlrev_b32 v9, 4, v9")
    A("v_xor_b32 v9, v9, v6")
    A("v_lshlrev_b32 v12, 2, v6")
    A("v_lshlrev_b32 v13, 2, v9")
    A("v_add_u32 v15, s2, v6")
    A("v_and_b32 v15, 3, v15")
    A("v_cmp_eq_u32 vcc, 1, v15")
    A("v_mov_b32 v15, 0x100000")
    A("s_nop 0")
    A("v_cndmask_b32 v15, 0, v15, vcc")
    A("v_add_u32 v6, v6, v15")
    A("v_add_u32 v9, v9, v15")
    A("s_waitcnt lgkmcnt(0)")
    A("global_load_dword v7, v12, s[12:13]")
    A("global_load_dword v14, v13, s[12:13]")
    for base, p in ((16, 6), (24, 8)):
        A(f"s_mov_b32 s{base}, s{p}"); A(f"s_mov_b32 s{base+1}, s{p+1}")
        A(f"s_mov_b32 s{base+2}, {KBYTES}"); A(f"s_mov_b32 s{base+3}, 0x20000")
    A("v_lshrrev_b32 v8, 2, v0")
    A("v_lshlrev_b32 v8, 11, v8")
    A("v_and_b32 v10, 3, v0")
    A("v_lshl_add_u32 v8, v10, 6, v8          ; token*2048 + (l&3)*64")
    A("v_mov_b32 v19, 2048")
    A("v_mov_b32 v10, 0")
    A("s_getreg_b32 s48, hwreg(HW_REG_XCC_ID, 0, 3)")
    A(f"v_mov_b32 v32, {NBUF}")
    A("s_bitcmp1_b32 s48, 0")
    A(f"s_mov_b32 s49, {F(1.0+par)}")
    A(f"s_cselect_b32 s49, {F(1.0-par)}, s49")
    A("s_lshl_b32 s48, s48, 5")
    A("s_add_u32 s47, s48, s32")
    A("v_mov_b32 v17, s47")
    A("v_and_b32 v28, 7, v0")
    A("v_lshlrev_b32 v28, 2, v28")
    A("v_add_u32 v28, s48, v28")
    A("s_waitcnt vmcnt(0)")
    A("v_cmp_lt_i32 vcc, 0, v7")
    A("v_cmp_lt_i32 s[40:41], 0, v14")
    A("v_min_i32 v7, v7, v19")
    A("v_min_i32 v14, v14, v19")
    A("v_cndmask_b32 v7, v19, v7, vcc")
    A("v_cndmask_b32 v14, v19, v14, s[40:41]")
    A("v_lshl_add_u32 v11, v7, 5, v6")
    A("v_lshl_add_u32 v14, v14, 5, v9")
    A("v_add_u32_dpp v15, v7, v7 row_shr:1 row_mask:0xf bank_mask:0xf bound_ctrl:0")
    A("v_sub_u32 v12, v14, v11")
    for k in range(1, 16):
        A(f"v_sub_u32_dpp v{12 + (k&1)}, v14, v11 row_ror:{k} row_mask:0xf bank_mask:0xf")
        A(f"v_alignbit_b32 v10, v10, v{12 + ((k-1)&1)}, 31")
        if k in (2, 4, 6):
            A(f"v_add_u32_dpp v15, v15, v15 row_shr:{ {2:2,4:4,6:8}[k] } row_mask:0xf bank_mask:0xf bound_ctrl:0")
        if k == 8:
            A("v_add_u32_dpp v15, v15, v15 row_bcast:15 row_mask:0xa bank_mask:0xf")
    A("v_alignbit_b32 v10, v10, v13, 31")
    A("v_bcnt_u32_b32 v10, v10, 0")
    A("v_readlane_b32 s40, v15, 31")
    A("v_mov_b32 v12, v10")
    A("v_readlane_b32 s38, v7, s32")
    A("s_nop 0")
    A("v_permlane32_swap_b32 v10, v12")
    A("v_add_u32 v10, v10, v12                ; rank")
    A("v_cvt_f32_u32 v24, s40")
    A("v_readlane_b32 s41, v10, s32")
    A(f"v_mul_f32 v13, {F(pf_gain*pf_thr/1024)}, v24")
    A("v_cvt_f32_u32 v12, v7")
    A("v_rcp_f32 v24, v24")
    A("s_mul_i32 s36, s41, 86")
    A("s_lshr_b32 s36, s36, 8                 ; rank / 3")
    A("s_mul_i32 s44, s36, 3")
    A("s_sub_u32 s44, s41, s44                ; rank % 3")
    A("s_sub_u32 s41, 31, s36")
    A("s_cmp_eq_u32 s35, 1")
    A("s_cselect_b32 s36, 100, s44")
    A("v_cmp_eq_u32 vcc, s41, v10")
    A(f"v_mul_f32 v12, {F(pf_gain/32)}, v12")
    A("v_sub_f32 v12, v12, v13")
    A("v_cvt_i32_f32 v12, v12")
    A("v_lshrrev_b32 v13, 5, v7")
    A("v_min_i32 v12, v12, v13")
    A("s_ff1_i32_b32 s41, vcc_lo")
    A("s_and_b32 s41, s41, 31")
    A("v_readlane_b32 s45, v12, s41")
    A("v_readlane_b32 s55, v12, s32")
    A("s_lshl_b32 s43, s41, 9")
    A("v_add_u32 v1, s43, v1")
    A("global_load_dwordx2 v[2:3], v1, s[10:11]")
    A("v_cvt_f32_u32 v25, s38")
    A("s_add_u32 s37, s41, s2")
    A("s_and_b32 s37, s37, 7")
    A("s_lshl_b32 s37, s37, 8")
    A("s_add_u32 s36, s36, 1")
    A("s_sub_i32 s45, s45, s36")
    A("s_add_u32 s38, s38, 31")
    A("s_lshr_b32 s38, s38, 5                 ; tiles")
    A("s_add_u32 s42, s38, 3")
    A("s_lshr_b32 s42, s42, 2")
    A("s_lshl_b32 s42, s42, 1")
    A("v_mul_f32 v25, v25, v24")
    A(f"v_mov_b32 v26, {F(bias*256)}")
    A(f"v_mul_f32 v25, {F(alpha*256*32)}, v25")
    A("v_add_f32 v26, v26, v25")
    A("v_mul_f32 v26, s49, v26")
    A("s_max_i32 s55, s55, 0")
    A("s_cmp_eq_u32 s35, 1")
    A("s_cselect_b32 s55, s55, 0")
    A("v_cvt_u32_f32 v30, v26")
    A("v_cvt_f32_u32 v12, s38")
    A("v_cvt_f32_u32 v16, s55")
    A(f"v_mov_b32 v18, {F(hitw - 1.0)}")
    A("v_fma_f32 v12, v16, v18, v12")
    A("v_rcp_f32 v12, v12")
    A(f"s_mul_i32 s46, s42, {256 - int(pub_start*256)}")
    A("s_lshr_b32 s46, s46, 8")
    A(f"s_mul_i32 s50, s42, {256 - int(fb_start*256)}")
    A("s_lshr_b32 s50, s50, 8")
    A("v_mov_b32 v19, -1")
    A("s_mov_b32 s51, 0")
    A("s_sub_u32 s42, s42, 2")
    A("s_barrier")
    A("ds_write_b32 v32, v30")
    A("s_barrier")
    A("s_waitcnt vmcnt(0)")
    A("v_lshlrev_b32 v2, 15, v2")
    A("v_lshlrev_b32 v3, 15, v3")
    A("v_add_u32 v2, s37, v2")
    A("v_add_u32 v3, s37, v3")
    A("L_pf_loop:")
    A("s_cmp_eq_u32 s51, 0")
    A("s_cbranch_scc1 L_pf_nofb")
    A("s_waitcnt vmcnt(0)")
    A("v_msad_u8 v33, v19, v30, 0")
    A("v_sad_u8 v30, v30, 0, 0")
    A("v_lshl_add_u32 v30, v33, 16, v30")
    A("s_nop 1")
    for sh in (1, 2, 4):
        A(f"v_add_u32_dpp v30, v30, v30 row_ror:{sh} row_mask:0xf bank_mask:0xf")
        if sh != 4: A("s_nop 1")
    A("v_lshrrev_b32 v33, 16, v30")
    A("v_and_b32 v30, 0xffff, v30")
    A("v_add_u32 v30, v30, v33")
    A("v_cvt_f32_u32 v30, v30")
    A("v_cvt_f32_u32 v33, v33")
    A("v_rcp_f32 v30, v30")
    A("s_mov_b32 s51, 0")
    A("v_mul_f32 v30, v30, v33")
    A(f"v_max_f32 v33, {F(fb_dmin)}, v30")
    A("v_rcp_f32 v33, v33")
    A("v_sub_f32 v30, v31, v30")
    A(f"v_mul_f32 v30, {F(fb_g)}, v30")
    A("v_fma_f32 v30, v30, v33, 1.0")
    A(f"v_max_f32 v30, {F(fb_lo)}, v30")
    A(f"v_min_f32 v30, {F(fb_hi)}, v30")
    A("v_mul_f32 v30, v30, v26")
    A("v_cvt_u32_f32 v30, v30")
    A("ds_write_b32 v32, v30")
    A("L_pf_nofb:")
    A("s_max_i32 s47, s45, 0")
    A("s_lshl_b32 s54, s42, 1")
    A("v_cvt_f32_u32 v15, s54")
    A("v_readlane_b32 s52, v2, s47")
    A("v_readlane_b32 s53, v3, s47")
    A(f"v_subrev_f32 v14, {F(pub_off/2)}, v15")
    A("v_min_f32 v13, v15, v16")
    A("v_fma_f32 v15, v13, v18, v15")
    A("v_min_f32 v13, v14, v16")
    A("v_fma_f32 v14, v13, v18, v14")
    A("v_mul_f32 v14, v14, v12")
    A(f"v_mov_b32 v13, {F(255.5)}")
    A(f"v_mul_f32 v14, {F(-255.0)}, v14")
    A("v_add_f32 v14, v14, v13")
    A("v_min_f32 v14, v14, v13")
    A("v_cvt_u32_f32 v14, v14")
    A("s_cmp_gt_u32 s42, s46")
    A("s_cbranch_scc1 L_pf_nopub")
    A("s_mov_b64 exec, 1")
    A("global_store_byte v17, v14, s[30:31]")
    A("s_mov_b64 exec, -1")
    A("s_cmp_gt_u32 s42, s50")
    A("s_cbranch_scc1 L_pf_nopub")
    A("s_waitcnt lgkmcnt(0)")
    A("global_load_dword v30, v28, s[30:31] nt")
    A("v_mul_f32 v31, v15, v12")
    A("s_mov_b32 s51, 1")
    A("L_pf_nopub:")
    A("s_cmp_lt_i32 s45, 0")
    A("s_cbranch_scc1 L_pf_nov")
    A("buffer_load_dword v20, v8, s[16:19], s52 offen")
    A("buffer_load_dword v21, v8, s[16:19], s53 offen")
    A("s_waitcnt vmcnt(0)")
    A("buffer_load_dword v22, v8, s[24:27], s52 offen")
    A("buffer_load_dword v23, v8, s[24:27], s53 offen")
    A("s_sub_i32 s45, s45, 3")
    A("L_pf_nov:")
    A("s_cmp_le_i32 s42, 1")
    A("s_cbranch_scc1 L_pf_exit")
    A("s_sub_u32 s42, s42, 1")
    A("s_barrier")
    A("s_branch L_pf_loop")
    A("L_pf_exit:")
    A("s_endpgm")

    P0, S0, O0, Q0, F0, B0, X0, KA = 40, 48, 64, 80, 112, 144, 176, 16
    VA0, VA1, vM, vL, vMC = 24, 25, 28, 29, 33
    vPW, vPR, vMW, vMR = 4, 5, 6, 7
    A("; ================================================================ consumers")
    A("L_consumer:")
    A("s_sub_u32 s34, s34, 1                  ; cw")
    A("v_and_b32 v1, 31, v0")
    A("v_lshrrev_b32 v2, 5, v0                ; hf")
    A("s_lshl_b32 s35, s32, 16")
    A("s_lshl_b32 s36, s33, 13")
    A("s_add_u32 s35, s35, s36")
    A("s_lshl_b32 s36, s32, 2")
    A("s_waitcnt lgkmcnt(0)")
    A("s_load_dword s37, s[12:13], s36")
    A("s_lshl_b32 s46, s34, 13                ; cw*8192")
    A("v_and_b32 v8, 3, v0")
    A("v_bfe_u32 v9, v0, 2, 2")
    A("v_lshl_add_u32 v10, v8, 2, v9")
    A("v_xor_b32 v10, v10, v2")
    A("v_lshlrev_b32 v10, 4, v10")
    A("v_lshl_add_u32 v10, v1, 8, v10")
    A(f"v_add_u32 v{KA}, s46, v10")
    A(f"v_add_u32 v{S0}, {QBUF}, v10")
    for kk in range(1, 8):
        A(f"v_xor_b32 v{S0+kk}, {32*kk}, v{S0}")
    for kk in range(1, 8):
        A(f"v_xor_b32 v{KA+kk}, {32*kk}, v{KA}")
    A("v_lshl_add_u32 v10, v2, 2, v9")
    A("v_lshlrev_b32 v10, 8, v10")
    A("v_xor_b32 v11, s34, v9")
    A("v_lshl_add_u32 v10, v11, 6, v10")
    A("v_bfe_u32 v11, v0, 4, 1")
    A("v_bfe_u32 v12, v0, 1, 1")
    A("v_lshl_add_u32 v11, v11, 1, v12")
    A("v_xor_b32 v11, v11, v2")
    A("v_lshl_add_u32 v10, v11, 4, v10")
    A("v_and_b32 v11, 1, v0")
    A(f"v_lshl_add_u32 v{VA0}, v11, 3, v10")
    A(f"v_xor_b32 v{VA1}, 32, v{VA0}")
    A("v_lshlrev_b32 v10, 4, v0")
    A(f"v_add_u32 v{vPR}, {PBUF}, v10")
    A("s_lshl_b32 s47, s34, 11")
    A(f"v_add_u32 v{vPW}, s47, v{vPR}")
    A("v_lshlrev_b32 v11, 5, v1")
    A(f"v_add_u32 v{vMR}, {MBUF}, v11")
    A("s_lshl_b32 s47, s34, 3")
    A(f"v_lshl_add_u32 v{vMW}, v2, 2, v{vMR}")
    A(f"v_add_u32 v{vMW}, s47, v{vMW}")
    for i in range(16):
        A(f"v_mov_b32 v{O0+i}, 0")
    A(f"v_mov_b32 v{vM}, {F(-1e30)}")
    A(f"v_mov_b32 v{vMC}, {F(-1e30)}")
    A(f"v_mov_b32 v{vL}, 0")
    A("v_mov_b32 v15, 0xff800000")
    A("s_lshl_b32 s47, s34, 6")
    A("s_add_u32 s47, s47, s35")
    A("v_lshrrev_b32 v36, 2, v0")
    A("v_and_b32 v37, 3, v0")
    A("v_lshlrev_b32 v3, 8, v36")
    A("v_lshl_add_u32 v3, v37, 4, v3")
    A("v_add_u32 v3, s47, v3")
    A("s_lshl_b32 s47, s34, 11")
    A(f"s_add_u32 s47, s47, {QBUF}")
    A("v_bfe_u32 v38, v0, 3, 2")
    A("v_xor_b32 v37, v37, v38")
    A("v_lshlrev_b32 v37, 4, v37")
    A("v_lshl_add_u32 v37, v36, 6, v37")
    A("v_add_u32 v13, s47, v37")
    A("v_bfe_u32 v38, v0, 1, 2")
    A("v_lshlrev_b32 v38, 4, v38")
    A("v_lshl_add_u32 v38, v1, 6, v38")
    A("v_lshl_add_u32 v38, v2, 3, v38")
    A("v_add_u32 v36, s47, v38")
    A("v_xor_b32 v37, 16, v36")
    A("v_xor_b32 v38, 32, v36")
    A("v_xor_b32 v12, 48, v36")
    A("s_waitcnt lgkmcnt(0)")
    A(f"s_mov_b32 s48, {F(128**-0.5*math.log2(math.e))}             ; D^-0.5 * log2(e)")
    A("s_cmp_gt_i32 s37, 0")
    A("s_cselect_b32 s48, s48, 0")
    A("s_cselect_b32 s37, s37, 2048")
    A("s_min_i32 s37, s37, 2048")
    A("s_add_u32 s38, s37, 31")
    A("s_lshr_b32 s38, s38, 5                 ; tiles")
    A("s_sub_u32 s40, s38, 1")
    A("s_and_b32 s41, s40, 3")
    A("s_add_u32 s41, s41, 1                  ; m")
    A("s_add_u32 s42, s38, 3")
    A("s_lshr_b32 s42, s42, 2")
    A("s_lshl_b32 s40, s40, 5")
    A("s_sub_u32 s40, s37, s40")
    A("s_cmp_eq_u32 s34, 0")
    A("s_cselect_b32 s40, s40, 64")
    A("s_cmp_lt_u32 s34, s41")
    A("s_cselect_b32 s40, s40, 0")
    A("v_lshlrev_b32 v14, 2, v2")
    A("v_sub_u32 v14, s40, v14")
    A("s_cbranch_scc1 L_active")
    A("v_add_u32 v11, s46, v10")
    A("v_add_u32 v11, 0x10000, v11")
    for i in range(8):
        A(f"ds_write_b128 v11, v[{O0}:{O0+3}] offset:{1024*i}")
    A("L_active:")
    A("s_mov_b32 s43, 1")
    A("s_mov_b32 s44, 0x8000")
    A("s_mov_b32 s45, 0")
    A("s_waitcnt vmcnt(0) lgkmcnt(0)")
    A("s_barrier")
    if stamps:
        A("s_memrealtime s[62:63]")
        A("s_waitcnt lgkmcnt(0)")
    for kk in range(8):
        A(f"ds_read_b128 v[{Q0+4*kk}:{Q0+4*kk+3}], v{S0+kk}")
    A("s_branch L_X")

    def e_ops():
        L = []
        L.append(f"v_max3_f32 v30, v{X0}, v{X0+1}, v{X0+2}")
        L.append(f"v_max3_f32 v31, v{X0+3}, v{X0+4}, v{X0+5}")
        L.append(f"v_max3_f32 v30, v30, v{X0+6}, v{X0+7}")
        L.append(f"v_max3_f32 v{vM}, v30, v31, v{vM}")
        L.append(f"v_mul_f32 v32, s48, v{vM}")
        L.append(f"v_sub_f32 v31, v{vMC}, v32")
        L.append(f"v_mov_b32 v{vMC}, v32")
        L.append("v_exp_f32 v34, v31")
        for g in range(4):
            for v in range(4*g, 4*g+4):
                L.append(f"v_fma_f32 v{S0+v}, v{S0+v}, s48, -v32")
            if g == 0: L.append(f"v_mul_f32 v{vL}, v{vL}, v34")
            for v in range(4*g, 4*g+4):
                L.append(f"v_exp_f32 v{S0+v}, v{S0+v}")
            if g:
                p = g - 1
                L.append(f"v_cvt_pk_bf16_f32 v{P0+2*p}, v{S0+4*p}, v{S0+4*p+1}")
                L.append(f"v_cvt_pk_bf16_f32 v{P0+2*p+1}, v{S0+4*p+2}, v{S0+4*p+3}")
                if p == 1: L.append(f"ds_write_b128 v{vPW}, v[{P0}:{P0+3}]")
                L.append(f"v_add_f32 v30, v{S0+4*p}, v{S0+4*p+1}")
                L.append(f"v_add_f32 v31, v{S0+4*p+2}, v{S0+4*p+3}")
                L.append(f"v_add_f32 v{vL}, v{vL}, v30")
                L.append(f"v_add_f32 v{vL}, v{vL}, v31")
        L.append(f"v_cvt_pk_bf16_f32 v{P0+6}, v{S0+12}, v{S0+13}")
        L.append(f"v_cvt_pk_bf16_f32 v{P0+7}, v{S0+14}, v{S0+15}")
        L.append(f"ds_write_b128 v{vPW}, v[{P0+4}:{P0+7}] offset:1024")
        L.append(f"v_add_f32 v30, v{S0+12}, v{S0+13}")
        L.append(f"v_add_f32 v31, v{S0+14}, v{S0+15}")
        L.append(f"v_add_f32 v{vL}, v{vL}, v30")
        L.append(f"v_add_f32 v{vL}, v{vL}, v31")
        return L
    def rdP(i): return f"ds_read_b128 v[{B0+4*i}:{B0+4*i+3}], v{vPR} offset:{2048*(i>>1) + 1024*(i&1)}"
    def rdV(i):
        r = F0 + 4*i
        return [f"ds_read_b64_tr_b16 v[{r}:{r+1}], v26 offset:{8192*(i>>1) + 4096*(i&1)}",
                f"ds_read_b64_tr_b16 v[{r+2}:{r+3}], v27 offset:{8192*(i>>1) + 4096*(i&1) + 2048}"]
    def rdX(): return [f"ds_read_b128 v[{X0}:{X0+3}], v{vMR}", f"ds_read_b128 v[{X0+4}:{X0+7}], v{vMR} offset:16"]
    def mm(i):
        r = F0 + 4*i
        return f"v_mfma_f32_32x32x16_bf16 v[{O0}:{O0+15}], v[{r}:{r+3}], v[{B0+4*i}:{B0+4*i+3}], v[{O0}:{O0+15}]"
    def vaddr():
        A("s_add_u32 s45, s45, 1")
        A("s_and_b32 s47, s45, 3")
        A("s_lshl_b32 s47, s47, 15")
        A(f"v_add_u32 v26, s47, v{VA0}")
        A(f"v_add_u32 v27, s47, v{VA1}")
    A("L_E0:")
    for x in rdX(): A(x)
    A("s_waitcnt lgkmcnt(0)")
    for x in e_ops(): A(x)
    A("s_branch L_tail")
    A("L_XB:")
    A("s_waitcnt lgkmcnt(0)")
    A("s_barrier")
    A("s_add_u32 s45, s45, 1")
    A("L_X:")
    for kk in range(8):
        A(f"ds_read_b128 v[{F0+4*kk}:{F0+4*kk+3}], v{KA+kk}")
    for kk in range(8):
        A(f"s_waitcnt lgkmcnt({7-kk})")
        c = "0" if kk == 0 else f"v[{S0}:{S0+15}]"
        A(f"v_mfma_f32_32x32x16_bf16 v[{S0}:{S0+15}], v[{F0+4*kk}:{F0+4*kk+3}], v[{Q0+4*kk}:{Q0+4*kk+3}], {c}")
    for i in range(8): A(f"v_xor_b32 v{KA+i}, s44, v{KA+i}")
    A("s_mov_b32 s44, 0x10000")
    vaddr()
    A("s_cmp_eq_u32 s43, 0")
    A("s_cbranch_scc1 L_nomask")
    for v in range(16):
        A(f"v_cmp_lt_i32 vcc, {8*(v>>2)+(v&3)}, v14")
        A("s_nop 1")
        A(f"v_cndmask_b32 v{S0+v}, v15, v{S0+v}, vcc")
    A("L_nomask:")
    A(f"v_max3_f32 v30, v{S0}, v{S0+1}, v{S0+2}")
    A(f"v_max3_f32 v31, v{S0+3}, v{S0+4}, v{S0+5}")
    A(f"v_max3_f32 v30, v30, v{S0+6}, v{S0+7}")
    A(f"v_max3_f32 v31, v31, v{S0+8}, v{S0+9}")
    A(f"v_max3_f32 v30, v30, v{S0+10}, v{S0+11}")
    A(f"v_max3_f32 v31, v31, v{S0+12}, v{S0+13}")
    A(f"v_max3_f32 v30, v30, v{S0+14}, v{S0+15}")
    A("v_max_f32 v30, v30, v31")
    A(f"ds_write_b32 v{vMW}, v30")
    A(f"v_xor_b32 v{vMW}, 0x400, v{vMW}")
    A("s_mov_b32 s43, 0")
    A("s_waitcnt lgkmcnt(0)")
    A("s_barrier")
    A("s_cbranch_scc0 L_E0")
    st = dict(n=0, done={})
    def emit_lds(x, tag=None):
        A(x); st["n"] += 1
        if tag is not None: st["done"][tag] = st["n"]
    for x in rdX(): emit_lds(x, "X")
    AH = 4
    for i in range(AH):
        emit_lds(rdP(i)); v = rdV(i); emit_lds(v[0]); emit_lds(v[1], i)
    E = e_ops()
    pos = [0]
    A(f"s_waitcnt lgkmcnt({st['n'] - st['done']['X']})")
    def take(n):
        k = 0
        while pos[0] < len(E) and k < n:
            x = E[pos[0]]; pos[0] += 1
            if x.startswith("ds_"): emit_lds(x)
            else: A(x)
            k += 2 if x.startswith("v_exp") else 1
    take(8)
    for i in range(8):
        A(f"s_waitcnt lgkmcnt({st['n'] - st['done'][i]})")
        A(mm(i))
        if i + AH < 8:
            emit_lds(rdP(i+AH)); v = rdV(i+AH); emit_lds(v[0]); emit_lds(v[1], i+AH)
        if i < 7: take(egap)
    rest = len(E) - pos[0]
    take(1000)
    A(f"v_xor_b32 v{vPR}, 0x2000, v{vPR}")
    pad = 12 - rest - 1
    if pad > 0: A(f"s_nop {pad-1}")
    for i in range(0, 16, 2):
        A(f"v_pk_mul_f32 v[{O0+i}:{O0+i+1}], v[{O0+i}:{O0+i+1}], v[34:35] op_sel_hi:[1,0]")
    A("L_tail:")
    A(f"v_xor_b32 v{vMR}, 0x400, v{vMR}")
    A(f"v_xor_b32 v{vPW}, 0x2000, v{vPW}")
    A("s_sub_u32 s42, s42, 1")
    A("s_cmp_eq_u32 s42, 0")
    A("s_cbranch_scc1 L_last")
    A("s_cmp_eq_u32 s45, 1")
    A("s_cbranch_scc1 L_X")
    A("s_branch L_XB")
    A("L_last:")
    A(f"v_or_b32 v{vMW}, 0x400, v{vMW}")
    A(f"v_or_b32 v{vMR}, 0x400, v{vMR}")
    A(f"ds_write_b32 v{vMW}, v{vL} offset:1024")
    A(f"v_add_u32 v{vMR}, 1024, v{vMR}")
    vaddr()
    A("s_waitcnt lgkmcnt(0)")
    A("s_barrier")
    NF = 6
    st["n"] = 0; st["done"] = {}
    for i in range(AH):
        emit_lds(rdP(i)); v = rdV(i); emit_lds(v[0]); emit_lds(v[1], i)
    extra = False
    for i in range(NF):
        A(f"s_waitcnt lgkmcnt({st['n'] - st['done'][i]})")
        A(mm(i))
        if i + AH < NF:
            emit_lds(rdP(i+AH)); v = rdV(i+AH); emit_lds(v[0]); emit_lds(v[1], i+AH)
        elif not extra:
            for k in range(NF, 8): emit_lds(rdP(k))
            for x in rdX(): emit_lds(x)
            extra = True
    A("s_waitcnt lgkmcnt(0)")
    A(f"v_add_f32 v30, v{X0}, v{X0+1}")
    A(f"v_add_f32 v31, v{X0+2}, v{X0+3}")
    A(f"v_add_f32 v32, v{X0+4}, v{X0+5}")
    A(f"v_add_f32 v33, v{X0+6}, v{X0+7}")
    A("v_add_f32 v30, v30, v31")
    A("v_add_f32 v32, v32, v33")
    A("v_add_f32 v30, v30, v32")
    A("v_rcp_f32 v34, v30")
    A("v_add_u32 v31, 4096, v3")
    A("s_barrier")
    for k in range(NF, 8):
        for x in rdV(k): A(x)
    for k in range(NF, 8):
        A(f"s_waitcnt lgkmcnt({2*(7-k)})")
        A(mm(k))
    A("s_nop 11")
    if stamps:
        A("s_memrealtime s[64:65]")
    for i in range(4):
        for k in (0, 2):
            r = O0 + 4*i + k
            A(f"v_pk_mul_f32 v[{r}:{r+1}], v[{r}:{r+1}], v[34:35] op_sel_hi:[1,0]")
        A(f"v_cvt_pk_bf16_f32 v{P0+2*i}, v{O0+4*i}, v{O0+4*i+1}")
        A(f"v_cvt_pk_bf16_f32 v{P0+2*i+1}, v{O0+4*i+2}, v{O0+4*i+3}")
        A(f"ds_write_b64 v{(36,37,38,12)[i]}, v[{P0+2*i}:{P0+2*i+1}]")
    A(f"ds_read_b128 v[{S0}:{S0+3}], v13")
    A(f"ds_read_b128 v[{S0+4}:{S0+7}], v13 offset:1024")
    A("s_waitcnt lgkmcnt(1)")
    A(f"global_store_dwordx4 v3, v[{S0}:{S0+3}], s[14:15]")
    A("s_waitcnt lgkmcnt(0)")
    A(f"global_store_dwordx4 v31, v[{S0+4}:{S0+7}], s[14:15]")
    if stamps:
        A("s_add_u32 s34, s34, 1")
        A("s_waitcnt vmcnt(0)")
        A("L_stamp:")
        A("s_memrealtime s[66:67]")
        A("s_mul_i32 s35, s2, 5"); A("s_add_u32 s35, s35, s34"); A("s_lshl_b32 s35, s35, 5")
        A("s_waitcnt lgkmcnt(0)")
        A("v_mov_b32 v12, s60"); A("v_mov_b32 v13, s61"); A("v_mov_b32 v14, s66"); A("v_mov_b32 v15, s67")
        A("v_mov_b32 v20, s62"); A("v_mov_b32 v21, s63"); A("v_mov_b32 v22, s64"); A("v_mov_b32 v23, s65")
        A("v_mov_b32 v16, s35")
        A("v_cmp_eq_u32 vcc, 0, v0")
        A("s_and_saveexec_b64 s[46:47], vcc")
        A("global_store_dwordx4 v16, v[12:15], s[68:69]")
        A("global_store_dwordx4 v16, v[20:23], s[68:69] offset:16")
        A("s_waitcnt vmcnt(0)")
    A("L_end:")
    A("s_endpgm")
    A('.section .rodata,"a"')
    A(".p2align 6")
    A(f".amdhsa_kernel {NAME}_kernel")
    A("  .amdhsa_next_free_vgpr 184")
    A("  .amdhsa_next_free_sgpr 72")
    A("  .amdhsa_accum_offset 184")
    A("  .amdhsa_group_segment_fixed_size 0")
    A("  .amdhsa_kernarg_size 64")
    A("  .amdhsa_user_sgpr_count 2")
    A("  .amdhsa_user_sgpr_kernarg_segment_ptr 1")
    A("  .amdhsa_system_sgpr_workgroup_id_x 1")
    A(".end_amdhsa_kernel")
    return "\n".join(o) + "\n"

if __name__ == "__main__":
    out = sys.argv[1]
    kw = {}
    for a in sys.argv[2:]:
        k, v = a.split("=", 1)
        try: v = json.loads(v)
        except Exception: pass
        kw[k] = v
    open(out, "w").write(gen(**kw))
```

```python
import sys, struct, math, json
NAME = "standalone__paged_block_table_kv_pagedattention__sampling"
KBYTES = 4100*32768
def f2u(x): return struct.unpack("<I", struct.pack("<f", x))[0]
def F(x): return hex(f2u(x))
HEADER = open("cdna_kernels/%s.s.ref" % NAME).read().split("; Override")[0]

PBUF = 131072
MBUF = PBUF + 16384
LBUF = MBUF + 2048
QBUF = LBUF + 1024
NBUF = QBUF + 8192
LDS_TOTAL = NBUF + 256

DOC = """; Design
;   The aux wave and d_debug only influence speed, never the result."""

def gen(nlo=8, nhi=34, nstep=2, n0=24, alpha=27.0, bias=-5.0, par=0.01, prior=20,
        pf_thr=0.96, pf_gain=1.8, hitw=0.55, space=3,
        fb_g=1.3, fb_dmin=0.15, fb_lo=0.8, fb_hi=1.25, fb_start=0.3, pub_start=0.2, pub_off=2.0,
        egap=8, stamps=False, valign=6, first_align=0, shift=0, kflag="nt", vflag="nt"):
    o = []
    A = o.append
    A(HEADER.rstrip())
    A(f"; @launch grid=(256,1,1) block=(384,1,1) lds={LDS_TOTAL}")
    A(DOC)
    A('.amdgcn_target "amdgcn-amd-amdhsa--gfx950"')
    A(".text")
    A(f".globl {NAME}_kernel")
    A(".p2align 8")
    A(f".type {NAME}_kernel,@function")
    A(f"{NAME}_kernel:")
    A("s_load_dwordx8 s[4:11], s[0:1], 0")
    A("s_load_dwordx4 s[12:15], s[0:1], 32")
    A("s_load_dwordx2 s[30:31], s[0:1], 48    ; debug")
    A("s_cmp_ge_u32 s2, 256")
    A("s_cbranch_scc1 L_end")
    if stamps:
        A("s_memrealtime s[60:61]")
        A("s_load_dwordx2 s[68:69], s[0:1], 56")
    A("s_getpc_b64 s[28:29]")
    A("L_pc0:")
    A("v_subrev_u32 v2, 64, v0")
    A("v_lshlrev_b32 v2, 7, v2")
    A("v_cmp_gt_u32 vcc, L_end-L_pc0, v2")
    A("s_and_saveexec_b64 s[36:37], vcc")
    A("s_cbranch_execz L_nocpf")
    A("global_load_dword v39, v2, s[28:29]")
    A("L_nocpf:")
    A("s_mov_b64 exec, -1")
    A("s_lshr_b32 s32, s2, 3                  ; b")
    A("s_add_u32 s33, s2, s32")
    A("s_and_b32 s33, s33, 7                  ; h = (id + b) & 7")
    A("v_lshrrev_b32 v1, 6, v0")
    A("v_and_b32 v0, 63, v0                   ; lane")
    A("v_readfirstlane_b32 s34, v1            ; wave")
    A("s_lshl_b32 s35, s32, 9")
    A("v_lshlrev_b32 v1, 3, v0")
    A("s_cmp_lg_u32 s34, 0")
    A("s_cbranch_scc1 L_notloader")

    A("; ================================================================ loader")
    A("s_setprio 3")
    A("v_add_u32 v1, s35, v1")
    A("s_lshl_b32 s35, s32, 2")
    A("v_lshrrev_b32 v4, 4, v0")
    A("v_and_b32 v5, 15, v0")
    A("v_lshlrev_b32 v16, 2, v4")
    A("v_xor_b32 v16, v5, v16")
    A("v_lshlrev_b32 v16, 4, v16")
    A("v_lshl_add_u32 v12, v4, 8, v16")
    for j in range(1, 4):
        A(f"v_xor_b32 v{12+j}, {16*j}, v12")
    A("s_lshl_b32 s52, s32, 3")
    A("s_add_u32 s52, s52, s33")
    A("s_lshl_b32 s52, s52, 13")
    A("s_add_u32 s53, s52, 4096")
    A(f"s_mov_b32 s26, {32*32*8*128*2}")
    A("s_mov_b32 s27, 0x20000")
    A(f"s_mov_b32 m0, {QBUF}")
    A("s_waitcnt lgkmcnt(0)")
    A("global_load_dwordx2 v[2:3], v1, s[10:11]")
    A("s_load_dword s37, s[12:13], s35")
    if stamps: A("s_memrealtime s[62:63]")
    A("s_mov_b32 s24, s4"); A("s_mov_b32 s25, s5")
    for j in range(8):
        if j == 4:
            A("s_add_u32 m0, m0, 4096"); A("s_nop 0")
        A(f"buffer_load_dwordx4 v{12 + (j&3)}, s[24:27], s{52 + j//4} offen offset:{1024*(j&3)} nt lds")
    for base in (16, 20):
        A(f"s_mov_b32 s{base}, s6"); A(f"s_mov_b32 s{base+1}, s7")
        A(f"s_mov_b32 s{base+2}, {KBYTES}"); A(f"s_mov_b32 s{base+3}, 0x20000")
    A("v_lshl_add_u32 v8, v4, 11, v16")
    for j in range(1, 4):
        A(f"v_xor_b32 v{8+j}, {16*j}, v8")
        A(f"v_add_u32 v{8+j}, {(8192-1024)*j}, v{8+j}")
    A("v_lshlrev_b32 v21, 5, v0")
    A("s_lshl_b32 s36, s33, 8                 ; h*256")
    A(f"s_mov_b32 s59, {KBYTES}")
    A("s_mov_b32 s42, 0")
    A("s_mov_b32 s56, 0")
    A("s_mov_b32 s54, 128")
    A("s_mov_b32 s49, 0")
    A(f"v_mov_b32 v32, {NBUF}")
    A("s_waitcnt lgkmcnt(0)")
    A("s_cmp_gt_i32 s37, 0")
    A("s_cselect_b32 s37, s37, 2048")
    A("s_min_i32 s37, s37, 2048")
    A("v_sub_u32 v21, s37, v21")
    A("s_sub_u32 s48, s37, 1")
    A("s_lshr_b32 s48, s48, 5")
    A("v_med3_i32 v4, v21, 0, 16")
    A("v_subrev_u32 v21, 16, v21")
    A("v_med3_i32 v5, v21, 0, 16")
    A("s_and_b32 s41, s48, 3")
    A("s_add_u32 s41, s41, 1")
    A("s_mov_b32 s50, s41")
    A("s_mov_b32 s46, s41")
    A("s_mul_i32 s39, s37, 9")
    A("s_lshr_b32 s39, s39, 1")
    A("s_sub_i32 s39, s39, 1280")
    A(f"s_max_i32 s39, s39, {prior*256}")
    A("v_mov_b32 v33, s39")
    A("s_waitcnt vmcnt(8)")
    if stamps: A("s_memrealtime s[64:65]")
    A("v_lshlrev_b32 v2, 15, v2")
    A("v_lshlrev_b32 v3, 15, v3")
    A("v_lshl_add_u32 v4, v4, 11, v2")
    A("v_lshl_add_u32 v5, v5, 11, v3")
    A("v_add_u32 v2, s36, v2")
    A("v_min_u32 v4, s59, v4")
    A("v_add_u32 v3, s36, v3")
    A("v_min_u32 v5, s59, v5")
    A("ds_write_b32 v32, v33")
    Ns = list(range(nlo, nhi+1, nstep))
    assert n0 in Ns
    def version(NN, fall=False, sfx="", flag=None):
        flag = kflag if flag is None else flag
        q, p = (NN-1) // 8, (NN-1) % 8
        if valign and not fall:
            A(f".p2align {valign}")
            for _ in range(shift): A("s_nop 0")
        if first_align and fall: A(f".p2align {first_align}")
        A(f"L_ld{sfx}{NN}:")
        A("v_readlane_b32 s52, v2, s48")
        A("v_readlane_b32 s18, v4, s48")
        A("v_readlane_b32 s53, v3, s48")
        A("v_readlane_b32 s22, v5, s48")
        A("s_mov_b32 m0, s49")
        A("s_sub_u32 s48, s48, 1")
        A("s_add_u32 s49, s49, 8192")
        A(f"s_sub_i32 s51, s42, {q}")
        A("s_add_u32 s42, s42, 1")
        for j in range(8):
            if j == 4: A("s_add_u32 m0, m0, 4096")
            if j == 6: A("ds_read_b32 v33, v32")
            if j == p: A("s_cmp_lt_i32 s51, s46")
            A(f"s_waitcnt vmcnt({NN-1})")
            if j == p:
                A(f"s_cbranch_scc1 L_ld{sfx}{NN}_np")
                A("s_barrier")
                A("s_add_u32 s43, s43, s44")
                A(f"s_add_u32 s51, s51, {space}")
                A("s_max_i32 s46, s43, s51")
                A("s_mov_b32 s44, s45")
                A("s_mov_b32 s45, 4")
                A(f"L_ld{sfx}{NN}_np:")
            srd = 16 if j < 4 else 20
            A(f"buffer_load_dwordx4 v{8 + (j&3)}, s[{srd}:{srd+3}], s{52 + j//4} offen offset:{1024*(j&3)} {flag} lds")
        A("s_sub_u32 s50, s50, 1")
        A("s_cmp_lg_u32 s50, 0")
        A(f"s_cbranch_scc1 L_ld{sfx}{NN}")
        if not fall: A("s_branch L_next")
    version(n0, fall=True)
    A("s_cmp_lg_u32 s56, 0")
    A("s_cbranch_scc1 L_next")
    A("s_mov_b32 s40, s48")
    A("s_add_u32 s55, s48, s41")
    A("s_mov_b32 s58, s41")
    A("s_mov_b32 s43, s41")
    A("s_cmp_ge_i32 s40, 0")
    A("s_cselect_b32 s44, 4, 0")
    A("s_mov_b32 s45, s41")
    A("s_add_u32 s47, s55, 1")
    A("s_lshl_b32 s47, s47, 1")
    A("L_next:")
    A("s_waitcnt lgkmcnt(0)")
    A("v_readfirstlane_b32 s39, v33")
    A("L_next2:")
    A("s_add_u32 s56, s56, 1")
    A("s_cmp_lt_i32 s55, 0")
    A("s_cbranch_scc1 L_drain")
    A("s_and_b32 s49, s56, 3")
    A("s_lshl_b32 s49, s49, 15")
    A("s_bitcmp1_b32 s56, 0")
    A("s_cbranch_scc0 L_setV")
    A("s_cmp_ge_i32 s40, 0")
    A("s_cbranch_scc1 L_setK")
    A("s_cmp_eq_u32 s56, 1")
    A("s_cbranch_scc1 L_next2")
    A("L_setV:")
    A("s_mov_b32 s16, s8"); A("s_mov_b32 s17, s9"); A("s_mov_b32 s20, s8"); A("s_mov_b32 s21, s9")
    A("s_mov_b32 s48, s55")
    A("s_mov_b32 s50, s58")
    A("s_sub_i32 s55, s55, s58")
    A("s_mov_b32 s58, 4")
    A("s_branch L_dispv")
    A("L_setK:")
    A("s_mov_b32 s16, s6"); A("s_mov_b32 s17, s7"); A("s_mov_b32 s20, s6"); A("s_mov_b32 s21, s7")
    A("s_mov_b32 s48, s40")
    A("s_mov_b32 s50, 4")
    A("s_sub_i32 s40, s40, 4")
    A("L_disp:")
    A("s_add_u32 s54, s54, s39")
    A("s_lshr_b32 s57, s54, 8")
    A(f"s_and_b32 s54, s54, {256*nstep-1}")
    def dispatch(lst, sfx=""):
        if len(lst) == 1:
            A(f"s_branch L_ld{sfx}{lst[0]}")
            return
        mid = len(lst)//2
        lab = f"L_disp{sfx}{lst[mid]}_{lst[-1]}"
        A(f"s_cmp_ge_u32 s57, {lst[mid]}")
        if len(lst) - mid == 1:
            A(f"s_cbranch_scc1 L_ld{sfx}{lst[mid]}")
            dispatch(lst[:mid], sfx)
        else:
            A(f"s_cbranch_scc1 {lab}")
            dispatch(lst[:mid], sfx)
            A(f"{lab}:")
            dispatch(lst[mid:], sfx)
    dispatch(Ns)
    A("L_dispv:")
    A("s_add_u32 s54, s54, s39")
    A("s_lshr_b32 s57, s54, 8")
    A(f"s_and_b32 s54, s54, {256*nstep-1}")
    dispatch(Ns, "v")
    for NN in Ns:
        if NN != n0: version(NN)
        version(NN, sfx="v", flag=vflag)
    A("L_drain:")
    A("s_sub_i32 s51, s47, s43")
    for c in range(6, 0, -1):
        A(f"L_drain{c}:")
        A(f"s_cmp_lt_i32 s51, {c}")
        A(f"s_cbranch_scc1 L_drain{c}_n")
        A(f"s_waitcnt vmcnt({8*c})")
        A("s_barrier")
        A("s_sub_i32 s51, s51, s44")
        A("s_mov_b32 s44, s45")
        A("s_mov_b32 s45, 4")
        A(f"s_branch L_drain{c}")
        A(f"L_drain{c}_n:")
    A("s_cmp_gt_u32 s47, 8")
    A("s_cbranch_scc1 L_last3")
    A("s_waitcnt vmcnt(0)")
    A("L_last3:")
    A("s_waitcnt vmcnt(8)")
    A("s_barrier")
    A("s_waitcnt vmcnt(0)")
    A("s_barrier")
    if stamps:
        A("s_branch L_stamp")
    A("s_endpgm")

    A("L_notloader:")
    A("s_cmp_lt_u32 s34, 5")
    A("s_cbranch_scc1 L_consumer")
    A("s_and_b32 s35, s33, 3")
    A("v_and_b32 v6, 31, v0")
    A("v_lshrrev_b32 v9, 5, v0")
    A("v_lshlrev_b32 v9, 4, v9")
    A("v_xor_b32 v9, v9, v6")
    A("v_lshlrev_b32 v12, 2, v6")
    A("v_lshlrev_b32 v13, 2, v9")
    A("v_add_u32 v15, s2, v6")
    A("v_and_b32 v15, 3, v15")
    A("v_cmp_eq_u32 vcc, 1, v15")
    A("v_mov_b32 v15, 0x100000")
    A("s_nop 0")
    A("v_cndmask_b32 v15, 0, v15, vcc")
    A("v_add_u32 v6, v6, v15")
    A("v_add_u32 v9, v9, v15")
    A("s_waitcnt lgkmcnt(0)")
    A("global_load_dword v7, v12, s[12:13]")
    A("global_load_dword v14, v13, s[12:13]")
    for base, p in ((16, 6), (24, 8)):
        A(f"s_mov_b32 s{base}, s{p}"); A(f"s_mov_b32 s{base+1}, s{p+1}")
        A(f"s_mov_b32 s{base+2}, {KBYTES}"); A(f"s_mov_b32 s{base+3}, 0x20000")
    A("v_lshrrev_b32 v8, 2, v0")
    A("v_lshlrev_b32 v8, 11, v8")
    A("v_and_b32 v10, 3, v0")
    A("v_lshl_add_u32 v8, v10, 6, v8          ; token*2048 + (l&3)*64")
    A("v_mov_b32 v19, 2048")
    A("v_mov_b32 v10, 0")
    A("s_getreg_b32 s48, hwreg(HW_REG_XCC_ID, 0, 3)")
    A(f"v_mov_b32 v32, {NBUF}")
    A("s_bitcmp1_b32 s48, 0")
    A(f"s_mov_b32 s49, {F(1.0+par)}")
    A(f"s_cselect_b32 s49, {F(1.0-par)}, s49")
    A("s_lshl_b32 s48, s48, 5")
    A("s_add_u32 s47, s48, s32")
    A("v_mov_b32 v17, s47")
    A("v_and_b32 v28, 7, v0")
    A("v_lshlrev_b32 v28, 2, v28")
    A("v_add_u32 v28, s48, v28")
    A("s_waitcnt vmcnt(0)")
    A("v_cmp_lt_i32 vcc, 0, v7")
    A("v_cmp_lt_i32 s[40:41], 0, v14")
    A("v_min_i32 v7, v7, v19")
    A("v_min_i32 v14, v14, v19")
    A("v_cndmask_b32 v7, v19, v7, vcc")
    A("v_cndmask_b32 v14, v19, v14, s[40:41]")
    A("v_lshl_add_u32 v11, v7, 5, v6")
    A("v_lshl_add_u32 v14, v14, 5, v9")
    A("v_add_u32_dpp v15, v7, v7 row_shr:1 row_mask:0xf bank_mask:0xf bound_ctrl:0")
    A("v_sub_u32 v12, v14, v11")
    for k in range(1, 16):
        A(f"v_sub_u32_dpp v{12 + (k&1)}, v14, v11 row_ror:{k} row_mask:0xf bank_mask:0xf")
        A(f"v_alignbit_b32 v10, v10, v{12 + ((k-1)&1)}, 31")
        if k in (2, 4, 6):
            A(f"v_add_u32_dpp v15, v15, v15 row_shr:{ {2:2,4:4,6:8}[k] } row_mask:0xf bank_mask:0xf bound_ctrl:0")
        if k == 8:
            A("v_add_u32_dpp v15, v15, v15 row_bcast:15 row_mask:0xa bank_mask:0xf")
    A("v_alignbit_b32 v10, v10, v13, 31")
    A("v_bcnt_u32_b32 v10, v10, 0")
    A("v_readlane_b32 s40, v15, 31")
    A("v_mov_b32 v12, v10")
    A("v_readlane_b32 s38, v7, s32")
    A("s_nop 0")
    A("v_permlane32_swap_b32 v10, v12")
    A("v_add_u32 v10, v10, v12                ; rank")
    A("v_cvt_f32_u32 v24, s40")
    A("v_readlane_b32 s41, v10, s32")
    A(f"v_mul_f32 v13, {F(pf_gain*pf_thr/1024)}, v24")
    A("v_cvt_f32_u32 v12, v7")
    A("v_rcp_f32 v24, v24")
    A("s_mul_i32 s36, s41, 86")
    A("s_lshr_b32 s36, s36, 8                 ; rank / 3")
    A("s_mul_i32 s44, s36, 3")
    A("s_sub_u32 s44, s41, s44                ; rank % 3")
    A("s_sub_u32 s41, 31, s36")
    A("s_cmp_eq_u32 s35, 1")
    A("s_cselect_b32 s36, 100, s44")
    A("v_cmp_eq_u32 vcc, s41, v10")
    A(f"v_mul_f32 v12, {F(pf_gain/32)}, v12")
    A("v_sub_f32 v12, v12, v13")
    A("v_cvt_i32_f32 v12, v12")
    A("v_lshrrev_b32 v13, 5, v7")
    A("v_min_i32 v12, v12, v13")
    A("s_ff1_i32_b32 s41, vcc_lo")
    A("s_and_b32 s41, s41, 31")
    A("v_readlane_b32 s45, v12, s41")
    A("v_readlane_b32 s55, v12, s32")
    A("s_lshl_b32 s43, s41, 9")
    A("v_add_u32 v1, s43, v1")
    A("global_load_dwordx2 v[2:3], v1, s[10:11]")
    A("v_cvt_f32_u32 v25, s38")
    A("s_add_u32 s37, s41, s2")
    A("s_and_b32 s37, s37, 7")
    A("s_lshl_b32 s37, s37, 8")
    A("s_add_u32 s36, s36, 1")
    A("s_sub_i32 s45, s45, s36")
    A("s_add_u32 s38, s38, 31")
    A("s_lshr_b32 s38, s38, 5                 ; tiles")
    A("s_add_u32 s42, s38, 3")
    A("s_lshr_b32 s42, s42, 2")
    A("s_lshl_b32 s42, s42, 1")
    A("v_mul_f32 v25, v25, v24")
    A(f"v_mov_b32 v26, {F(bias*256)}")
    A(f"v_mul_f32 v25, {F(alpha*256*32)}, v25")
    A("v_add_f32 v26, v26, v25")
    A("v_mul_f32 v26, s49, v26")
    A("s_max_i32 s55, s55, 0")
    A("s_cmp_eq_u32 s35, 1")
    A("s_cselect_b32 s55, s55, 0")
    A("v_cvt_u32_f32 v30, v26")
    A("v_cvt_f32_u32 v12, s38")
    A("v_cvt_f32_u32 v16, s55")
    A(f"v_mov_b32 v18, {F(hitw - 1.0)}")
    A("v_fma_f32 v12, v16, v18, v12")
    A("v_rcp_f32 v12, v12")
    A(f"s_mul_i32 s46, s42, {256 - int(pub_start*256)}")
    A("s_lshr_b32 s46, s46, 8")
    A(f"s_mul_i32 s50, s42, {256 - int(fb_start*256)}")
    A("s_lshr_b32 s50, s50, 8")
    A("v_mov_b32 v19, -1")
    A("s_mov_b32 s51, 0")
    A("s_sub_u32 s42, s42, 2")
    A("s_barrier")
    A("ds_write_b32 v32, v30")
    A("s_barrier")
    A("s_waitcnt vmcnt(0)")
    A("v_lshlrev_b32 v2, 15, v2")
    A("v_lshlrev_b32 v3, 15, v3")
    A("v_add_u32 v2, s37, v2")
    A("v_add_u32 v3, s37, v3")
    A("L_pf_loop:")
    A("s_cmp_eq_u32 s51, 0")
    A("s_cbranch_scc1 L_pf_nofb")
    A("s_waitcnt vmcnt(0)")
    A("v_msad_u8 v33, v19, v30, 0")
    A("v_sad_u8 v30, v30, 0, 0")
    A("v_lshl_add_u32 v30, v33, 16, v30")
    A("s_nop 1")
    for sh in (1, 2, 4):
        A(f"v_add_u32_dpp v30, v30, v30 row_ror:{sh} row_mask:0xf bank_mask:0xf")
        if sh != 4: A("s_nop 1")
    A("v_lshrrev_b32 v33, 16, v30")
    A("v_and_b32 v30, 0xffff, v30")
    A("v_add_u32 v30, v30, v33")
    A("v_cvt_f32_u32 v30, v30")
    A("v_cvt_f32_u32 v33, v33")
    A("v_rcp_f32 v30, v30")
    A("s_mov_b32 s51, 0")
    A("v_mul_f32 v30, v30, v33")
    A(f"v_max_f32 v33, {F(fb_dmin)}, v30")
    A("v_rcp_f32 v33, v33")
    A("v_sub_f32 v30, v31, v30")
    A(f"v_mul_f32 v30, {F(fb_g)}, v30")
    A("v_fma_f32 v30, v30, v33, 1.0")
    A(f"v_max_f32 v30, {F(fb_lo)}, v30")
    A(f"v_min_f32 v30, {F(fb_hi)}, v30")
    A("v_mul_f32 v30, v30, v26")
    A("v_cvt_u32_f32 v30, v30")
    A("ds_write_b32 v32, v30")
    A("L_pf_nofb:")
    A("s_max_i32 s47, s45, 0")
    A("s_lshl_b32 s54, s42, 1")
    A("v_cvt_f32_u32 v15, s54")
    A("v_readlane_b32 s52, v2, s47")
    A("v_readlane_b32 s53, v3, s47")
    A(f"v_subrev_f32 v14, {F(pub_off/2)}, v15")
    A("v_min_f32 v13, v15, v16")
    A("v_fma_f32 v15, v13, v18, v15")
    A("v_min_f32 v13, v14, v16")
    A("v_fma_f32 v14, v13, v18, v14")
    A("v_mul_f32 v14, v14, v12")
    A(f"v_mov_b32 v13, {F(255.5)}")
    A(f"v_mul_f32 v14, {F(-255.0)}, v14")
    A("v_add_f32 v14, v14, v13")
    A("v_min_f32 v14, v14, v13")
    A("v_cvt_u32_f32 v14, v14")
    A("s_cmp_gt_u32 s42, s46")
    A("s_cbranch_scc1 L_pf_nopub")
    A("s_mov_b64 exec, 1")
    A("global_store_byte v17, v14, s[30:31]")
    A("s_mov_b64 exec, -1")
    A("s_cmp_gt_u32 s42, s50")
    A("s_cbranch_scc1 L_pf_nopub")
    A("s_waitcnt lgkmcnt(0)")
    A("global_load_dword v30, v28, s[30:31] nt")
    A("v_mul_f32 v31, v15, v12")
    A("s_mov_b32 s51, 1")
    A("L_pf_nopub:")
    A("s_cmp_lt_i32 s45, 0")
    A("s_cbranch_scc1 L_pf_nov")
    A("buffer_load_dword v20, v8, s[16:19], s52 offen")
    A("buffer_load_dword v21, v8, s[16:19], s53 offen")
    A("s_waitcnt vmcnt(0)")
    A("buffer_load_dword v22, v8, s[24:27], s52 offen")
    A("buffer_load_dword v23, v8, s[24:27], s53 offen")
    A("s_sub_i32 s45, s45, 3")
    A("L_pf_nov:")
    A("s_cmp_le_i32 s42, 1")
    A("s_cbranch_scc1 L_pf_exit")
    A("s_sub_u32 s42, s42, 1")
    A("s_barrier")
    A("s_branch L_pf_loop")
    A("L_pf_exit:")
    A("s_endpgm")

    P0, S0, O0, Q0, F0, B0, X0, KA = 40, 48, 64, 80, 112, 144, 176, 16
    VA0, VA1, vM, vL, vMC = 24, 25, 28, 29, 33
    vPW, vPR, vMW, vMR = 4, 5, 6, 7
    A("; ================================================================ consumers")
    A("L_consumer:")
    A("s_sub_u32 s34, s34, 1                  ; cw")
    A("v_and_b32 v1, 31, v0")
    A("v_lshrrev_b32 v2, 5, v0                ; hf")
    A("s_lshl_b32 s35, s32, 16")
    A("s_lshl_b32 s36, s33, 13")
    A("s_add_u32 s35, s35, s36")
    A("s_lshl_b32 s36, s32, 2")
    A("s_waitcnt lgkmcnt(0)")
    A("s_load_dword s37, s[12:13], s36")
    A("s_lshl_b32 s46, s34, 13                ; cw*8192")
    A("v_and_b32 v8, 3, v0")
    A("v_bfe_u32 v9, v0, 2, 2")
    A("v_lshl_add_u32 v10, v8, 2, v9")
    A("v_xor_b32 v10, v10, v2")
    A("v_lshlrev_b32 v10, 4, v10")
    A("v_lshl_add_u32 v10, v1, 8, v10")
    A(f"v_add_u32 v{KA}, s46, v10")
    A(f"v_add_u32 v{S0}, {QBUF}, v10")
    for kk in range(1, 8):
        A(f"v_xor_b32 v{S0+kk}, {32*kk}, v{S0}")
    for kk in range(1, 8):
        A(f"v_xor_b32 v{KA+kk}, {32*kk}, v{KA}")
    A("v_lshl_add_u32 v10, v2, 2, v9")
    A("v_lshlrev_b32 v10, 8, v10")
    A("v_xor_b32 v11, s34, v9")
    A("v_lshl_add_u32 v10, v11, 6, v10")
    A("v_bfe_u32 v11, v0, 4, 1")
    A("v_bfe_u32 v12, v0, 1, 1")
    A("v_lshl_add_u32 v11, v11, 1, v12")
    A("v_xor_b32 v11, v11, v2")
    A("v_lshl_add_u32 v10, v11, 4, v10")
    A("v_and_b32 v11, 1, v0")
    A(f"v_lshl_add_u32 v{VA0}, v11, 3, v10")
    A(f"v_xor_b32 v{VA1}, 32, v{VA0}")
    A("v_lshlrev_b32 v10, 4, v0")
    A(f"v_add_u32 v{vPR}, {PBUF}, v10")
    A("s_lshl_b32 s47, s34, 11")
    A(f"v_add_u32 v{vPW}, s47, v{vPR}")
    A("v_lshlrev_b32 v11, 5, v1")
    A(f"v_add_u32 v{vMR}, {MBUF}, v11")
    A("s_lshl_b32 s47, s34, 3")
    A(f"v_lshl_add_u32 v{vMW}, v2, 2, v{vMR}")
    A(f"v_add_u32 v{vMW}, s47, v{vMW}")
    for i in range(16):
        A(f"v_mov_b32 v{O0+i}, 0")
    A(f"v_mov_b32 v{vM}, {F(-1e30)}")
    A(f"v_mov_b32 v{vMC}, {F(-1e30)}")
    A(f"v_mov_b32 v{vL}, 0")
    A("v_mov_b32 v15, 0xff800000")
    A("s_lshl_b32 s47, s34, 6")
    A("s_add_u32 s47, s47, s35")
    A("v_lshrrev_b32 v36, 2, v0")
    A("v_and_b32 v37, 3, v0")
    A("v_lshlrev_b32 v3, 8, v36")
    A("v_lshl_add_u32 v3, v37, 4, v3")
    A("v_add_u32 v3, s47, v3")
    A("s_lshl_b32 s47, s34, 11")
    A(f"s_add_u32 s47, s47, {QBUF}")
    A("v_bfe_u32 v38, v0, 3, 2")
    A("v_xor_b32 v37, v37, v38")
    A("v_lshlrev_b32 v37, 4, v37")
    A("v_lshl_add_u32 v37, v36, 6, v37")
    A("v_add_u32 v13, s47, v37")
    A("v_bfe_u32 v38, v0, 1, 2")
    A("v_lshlrev_b32 v38, 4, v38")
    A("v_lshl_add_u32 v38, v1, 6, v38")
    A("v_lshl_add_u32 v38, v2, 3, v38")
    A("v_add_u32 v36, s47, v38")
    A("v_xor_b32 v37, 16, v36")
    A("v_xor_b32 v38, 32, v36")
    A("v_xor_b32 v12, 48, v36")
    A("s_waitcnt lgkmcnt(0)")
    A(f"s_mov_b32 s48, {F(128**-0.5*math.log2(math.e))}             ; D^-0.5 * log2(e)")
    A("s_cmp_gt_i32 s37, 0")
    A("s_cselect_b32 s48, s48, 0")
    A("s_cselect_b32 s37, s37, 2048")
    A("s_min_i32 s37, s37, 2048")
    A("s_add_u32 s38, s37, 31")
    A("s_lshr_b32 s38, s38, 5                 ; tiles")
    A("s_sub_u32 s40, s38, 1")
    A("s_and_b32 s41, s40, 3")
    A("s_add_u32 s41, s41, 1                  ; m")
    A("s_add_u32 s42, s38, 3")
    A("s_lshr_b32 s42, s42, 2")
    A("s_lshl_b32 s40, s40, 5")
    A("s_sub_u32 s40, s37, s40")
    A("s_cmp_eq_u32 s34, 0")
    A("s_cselect_b32 s40, s40, 64")
    A("s_cmp_lt_u32 s34, s41")
    A("s_cselect_b32 s40, s40, 0")
    A("v_lshlrev_b32 v14, 2, v2")
    A("v_sub_u32 v14, s40, v14")
    A("s_cbranch_scc1 L_active")
    A("v_add_u32 v11, s46, v10")
    A("v_add_u32 v11, 0x10000, v11")
    for i in range(8):
        A(f"ds_write_b128 v11, v[{O0}:{O0+3}] offset:{1024*i}")
    A("L_active:")
    A("s_mov_b32 s43, 1")
    A("s_mov_b32 s44, 0x8000")
    A("s_mov_b32 s45, 0")
    A("s_waitcnt vmcnt(0) lgkmcnt(0)")
    A("s_barrier")
    if stamps:
        A("s_memrealtime s[62:63]")
        A("s_waitcnt lgkmcnt(0)")
    for kk in range(8):
        A(f"ds_read_b128 v[{Q0+4*kk}:{Q0+4*kk+3}], v{S0+kk}")
    A("s_branch L_X")

    def e_ops():
        L = []
        L.append(f"v_max3_f32 v30, v{X0}, v{X0+1}, v{X0+2}")
        L.append(f"v_max3_f32 v31, v{X0+3}, v{X0+4}, v{X0+5}")
        L.append(f"v_max3_f32 v30, v30, v{X0+6}, v{X0+7}")
        L.append(f"v_max3_f32 v{vM}, v30, v31, v{vM}")
        L.append(f"v_mul_f32 v32, s48, v{vM}")
        L.append(f"v_sub_f32 v31, v{vMC}, v32")
        L.append(f"v_mov_b32 v{vMC}, v32")
        L.append("v_exp_f32 v34, v31")
        for g in range(4):
            for v in range(4*g, 4*g+4):
                L.append(f"v_fma_f32 v{S0+v}, v{S0+v}, s48, -v32")
            if g == 0: L.append(f"v_mul_f32 v{vL}, v{vL}, v34")
            for v in range(4*g, 4*g+4):
                L.append(f"v_exp_f32 v{S0+v}, v{S0+v}")
            if g:
                p = g - 1
                L.append(f"v_cvt_pk_bf16_f32 v{P0+2*p}, v{S0+4*p}, v{S0+4*p+1}")
                L.append(f"v_cvt_pk_bf16_f32 v{P0+2*p+1}, v{S0+4*p+2}, v{S0+4*p+3}")
                if p == 1: L.append(f"ds_write_b128 v{vPW}, v[{P0}:{P0+3}]")
                L.append(f"v_add_f32 v30, v{S0+4*p}, v{S0+4*p+1}")
                L.append(f"v_add_f32 v31, v{S0+4*p+2}, v{S0+4*p+3}")
                L.append(f"v_add_f32 v{vL}, v{vL}, v30")
                L.append(f"v_add_f32 v{vL}, v{vL}, v31")
        L.append(f"v_cvt_pk_bf16_f32 v{P0+6}, v{S0+12}, v{S0+13}")
        L.append(f"v_cvt_pk_bf16_f32 v{P0+7}, v{S0+14}, v{S0+15}")
        L.append(f"ds_write_b128 v{vPW}, v[{P0+4}:{P0+7}] offset:1024")
        L.append(f"v_add_f32 v30, v{S0+12}, v{S0+13}")
        L.append(f"v_add_f32 v31, v{S0+14}, v{S0+15}")
        L.append(f"v_add_f32 v{vL}, v{vL}, v30")
        L.append(f"v_add_f32 v{vL}, v{vL}, v31")
        return L
    def rdP(i): return f"ds_read_b128 v[{B0+4*i}:{B0+4*i+3}], v{vPR} offset:{2048*(i>>1) + 1024*(i&1)}"
    def rdV(i):
        r = F0 + 4*i
        return [f"ds_read_b64_tr_b16 v[{r}:{r+1}], v26 offset:{8192*(i>>1) + 4096*(i&1)}",
                f"ds_read_b64_tr_b16 v[{r+2}:{r+3}], v27 offset:{8192*(i>>1) + 4096*(i&1) + 2048}"]
    def rdX(): return [f"ds_read_b128 v[{X0}:{X0+3}], v{vMR}", f"ds_read_b128 v[{X0+4}:{X0+7}], v{vMR} offset:16"]
    def mm(i):
        r = F0 + 4*i
        return f"v_mfma_f32_32x32x16_bf16 v[{O0}:{O0+15}], v[{r}:{r+3}], v[{B0+4*i}:{B0+4*i+3}], v[{O0}:{O0+15}]"
    def vaddr():
        A("s_add_u32 s45, s45, 1")
        A("s_and_b32 s47, s45, 3")
        A("s_lshl_b32 s47, s47, 15")
        A(f"v_add_u32 v26, s47, v{VA0}")
        A(f"v_add_u32 v27, s47, v{VA1}")
    A("L_E0:")
    for x in rdX(): A(x)
    A("s_waitcnt lgkmcnt(0)")
    for x in e_ops(): A(x)
    A("s_branch L_tail")
    A("L_XB:")
    A("s_waitcnt lgkmcnt(0)")
    A("s_barrier")
    A("s_add_u32 s45, s45, 1")
    A("L_X:")
    for kk in range(8):
        A(f"ds_read_b128 v[{F0+4*kk}:{F0+4*kk+3}], v{KA+kk}")
    for kk in range(8):
        A(f"s_waitcnt lgkmcnt({7-kk})")
        c = "0" if kk == 0 else f"v[{S0}:{S0+15}]"
        A(f"v_mfma_f32_32x32x16_bf16 v[{S0}:{S0+15}], v[{F0+4*kk}:{F0+4*kk+3}], v[{Q0+4*kk}:{Q0+4*kk+3}], {c}")
    for i in range(8): A(f"v_xor_b32 v{KA+i}, s44, v{KA+i}")
    A("s_mov_b32 s44, 0x10000")
    vaddr()
    A("s_cmp_eq_u32 s43, 0")
    A("s_cbranch_scc1 L_nomask")
    for v in range(16):
        A(f"v_cmp_lt_i32 vcc, {8*(v>>2)+(v&3)}, v14")
        A("s_nop 1")
        A(f"v_cndmask_b32 v{S0+v}, v15, v{S0+v}, vcc")
    A("L_nomask:")
    A(f"v_max3_f32 v30, v{S0}, v{S0+1}, v{S0+2}")
    A(f"v_max3_f32 v31, v{S0+3}, v{S0+4}, v{S0+5}")
    A(f"v_max3_f32 v30, v30, v{S0+6}, v{S0+7}")
    A(f"v_max3_f32 v31, v31, v{S0+8}, v{S0+9}")
    A(f"v_max3_f32 v30, v30, v{S0+10}, v{S0+11}")
    A(f"v_max3_f32 v31, v31, v{S0+12}, v{S0+13}")
    A(f"v_max3_f32 v30, v30, v{S0+14}, v{S0+15}")
    A("v_max_f32 v30, v30, v31")
    A(f"ds_write_b32 v{vMW}, v30")
    A(f"v_xor_b32 v{vMW}, 0x400, v{vMW}")
    A("s_mov_b32 s43, 0")
    A("s_waitcnt lgkmcnt(0)")
    A("s_barrier")
    A("s_cbranch_scc0 L_E0")
    st = dict(n=0, done={})
    def emit_lds(x, tag=None):
        A(x); st["n"] += 1
        if tag is not None: st["done"][tag] = st["n"]
    for x in rdX(): emit_lds(x, "X")
    AH = 4
    for i in range(AH):
        emit_lds(rdP(i)); v = rdV(i); emit_lds(v[0]); emit_lds(v[1], i)
    E = e_ops()
    pos = [0]
    A(f"s_waitcnt lgkmcnt({st['n'] - st['done']['X']})")
    def take(n):
        k = 0
        while pos[0] < len(E) and k < n:
            x = E[pos[0]]; pos[0] += 1
            if x.startswith("ds_"): emit_lds(x)
            else: A(x)
            k += 2 if x.startswith("v_exp") else 1
    take(8)
    for i in range(8):
        A(f"s_waitcnt lgkmcnt({st['n'] - st['done'][i]})")
        A(mm(i))
        if i + AH < 8:
            emit_lds(rdP(i+AH)); v = rdV(i+AH); emit_lds(v[0]); emit_lds(v[1], i+AH)
        if i < 7: take(egap)
    rest = len(E) - pos[0]
    take(1000)
    A(f"v_xor_b32 v{vPR}, 0x2000, v{vPR}")
    pad = 12 - rest - 1
    if pad > 0: A(f"s_nop {pad-1}")
    for i in range(0, 16, 2):
        A(f"v_pk_mul_f32 v[{O0+i}:{O0+i+1}], v[{O0+i}:{O0+i+1}], v[34:35] op_sel_hi:[1,0]")
    A("L_tail:")
    A(f"v_xor_b32 v{vMR}, 0x400, v{vMR}")
    A(f"v_xor_b32 v{vPW}, 0x2000, v{vPW}")
    A("s_sub_u32 s42, s42, 1")
    A("s_cmp_eq_u32 s42, 0")
    A("s_cbranch_scc1 L_last")
    A("s_cmp_eq_u32 s45, 1")
    A("s_cbranch_scc1 L_X")
    A("s_branch L_XB")
    A("L_last:")
    A(f"v_or_b32 v{vMW}, 0x400, v{vMW}")
    A(f"v_or_b32 v{vMR}, 0x400, v{vMR}")
    A(f"ds_write_b32 v{vMW}, v{vL} offset:1024")
    A(f"v_add_u32 v{vMR}, 1024, v{vMR}")
    vaddr()
    A("s_waitcnt lgkmcnt(0)")
    A("s_barrier")
    NF = 6
    st["n"] = 0; st["done"] = {}
    for i in range(AH):
        emit_lds(rdP(i)); v = rdV(i); emit_lds(v[0]); emit_lds(v[1], i)
    extra = False
    for i in range(NF):
        A(f"s_waitcnt lgkmcnt({st['n'] - st['done'][i]})")
        A(mm(i))
        if i + AH < NF:
            emit_lds(rdP(i+AH)); v = rdV(i+AH); emit_lds(v[0]); emit_lds(v[1], i+AH)
        elif not extra:
            for k in range(NF, 8): emit_lds(rdP(k))
            for x in rdX(): emit_lds(x)
            extra = True
    A("s_waitcnt lgkmcnt(0)")
    A(f"v_add_f32 v30, v{X0}, v{X0+1}")
    A(f"v_add_f32 v31, v{X0+2}, v{X0+3}")
    A(f"v_add_f32 v32, v{X0+4}, v{X0+5}")
    A(f"v_add_f32 v33, v{X0+6}, v{X0+7}")
    A("v_add_f32 v30, v30, v31")
    A("v_add_f32 v32, v32, v33")
    A("v_add_f32 v30, v30, v32")
    A("v_rcp_f32 v34, v30")
    A("v_add_u32 v31, 4096, v3")
    A("s_barrier")
    for k in range(NF, 8):
        for x in rdV(k): A(x)
    for k in range(NF, 8):
        A(f"s_waitcnt lgkmcnt({2*(7-k)})")
        A(mm(k))
    A("s_nop 11")
    if stamps:
        A("s_memrealtime s[64:65]")
    for i in range(4):
        for k in (0, 2):
            r = O0 + 4*i + k
            A(f"v_pk_mul_f32 v[{r}:{r+1}], v[{r}:{r+1}], v[34:35] op_sel_hi:[1,0]")
        A(f"v_cvt_pk_bf16_f32 v{P0+2*i}, v{O0+4*i}, v{O0+4*i+1}")
        A(f"v_cvt_pk_bf16_f32 v{P0+2*i+1}, v{O0+4*i+2}, v{O0+4*i+3}")
        A(f"ds_write_b64 v{(36,37,38,12)[i]}, v[{P0+2*i}:{P0+2*i+1}]")
    A(f"ds_read_b128 v[{S0}:{S0+3}], v13")
    A(f"ds_read_b128 v[{S0+4}:{S0+7}], v13 offset:1024")
    A("s_waitcnt lgkmcnt(1)")
    A(f"global_store_dwordx4 v3, v[{S0}:{S0+3}], s[14:15]")
    A("s_waitcnt lgkmcnt(0)")
    A(f"global_store_dwordx4 v31, v[{S0+4}:{S0+7}], s[14:15]")
    if stamps:
        A("s_add_u32 s34, s34, 1")
        A("s_waitcnt vmcnt(0)")
        A("L_stamp:")
        A("s_memrealtime s[66:67]")
        A("s_mul_i32 s35, s2, 5"); A("s_add_u32 s35, s35, s34"); A("s_lshl_b32 s35, s35, 5")
        A("s_waitcnt lgkmcnt(0)")
        A("v_mov_b32 v12, s60"); A("v_mov_b32 v13, s61"); A("v_mov_b32 v14, s66"); A("v_mov_b32 v15, s67")
        A("v_mov_b32 v20, s62"); A("v_mov_b32 v21, s63"); A("v_mov_b32 v22, s64"); A("v_mov_b32 v23, s65")
        A("v_mov_b32 v16, s35")
        A("v_cmp_eq_u32 vcc, 0, v0")
        A("s_and_saveexec_b64 s[46:47], vcc")
        A("global_store_dwordx4 v16, v[12:15], s[68:69]")
        A("global_store_dwordx4 v16, v[20:23], s[68:69] offset:16")
        A("s_waitcnt vmcnt(0)")
    A("L_end:")
    A("s_endpgm")
    A('.section .rodata,"a"')
    A(".p2align 6")
    A(f".amdhsa_kernel {NAME}_kernel")
    A("  .amdhsa_next_free_vgpr 184")
    A("  .amdhsa_next_free_sgpr 72")
    A("  .amdhsa_accum_offset 184")
    A("  .amdhsa_group_segment_fixed_size 0")
    A("  .amdhsa_kernarg_size 64")
    A("  .amdhsa_user_sgpr_count 2")
    A("  .amdhsa_user_sgpr_kernarg_segment_ptr 1")
    A("  .amdhsa_system_sgpr_workgroup_id_x 1")
    A(".end_amdhsa_kernel")
    return "\n".join(o) + "\n"

if __name__ == "__main__":
    out = sys.argv[1]
    kw = {}
    for a in sys.argv[2:]:
        k, v = a.split("=", 1)
        try: v = json.loads(v)
        except Exception: pass
        kw[k] = v
    open(out, "w").write(gen(**kw))
```

```python
import sys, struct, math, json
NAME = "standalone__paged_block_table_kv_pagedattention__sampling"
KBYTES = 4100*32768
def f2u(x): return struct.unpack("<I", struct.pack("<f", x))[0]
def F(x): return hex(f2u(x))
HEADER = open("cdna_kernels/%s.s.ref" % NAME).read().split("; Override")[0]

PBUF = 131072
MBUF = PBUF + 16384
LBUF = MBUF + 2048
QBUF = LBUF + 1024
NBUF = QBUF + 8192
SBUF = NBUF + 256
LDS_TOTAL = SBUF + 1536

DOC = """; Design
;   The aux wave and d_debug only influence speed, never the result."""

def gen(nlo=8, nhi=34, nstep=2, n0=24, alpha=27.0, bias=-5.0, par=0.01, prior=20,
        pf_thr=0.96, pf_gain=1.8, hitw=0.55, space=3,
        fb_g=1.3, fb_dmin=0.15, fb_lo=0.8, fb_hi=1.25, fb_start=0.3, pub_start=0.2, pub_off=2.0,
        egap=8, stamps=False, valign=6, first_align=0, shift=0, bshift=6):
    o = []
    A = o.append
    def sort_pages(va, vb, sT, base, t, lab):
        c0, c1, p0, p1, x, y, z, one = range(t, t+8)
        A(f"v_lshlrev_b32 v{x}, 2, v0")
        A(f"v_mov_b32 v{y}, 0")
        A(f"v_add_u32 v{x}, {base}, v{x}")
        A(f"v_lshrrev_b32 v{c0}, {bshift}, v{va}")
        A(f"ds_write_b32 v{x}, v{y}")
        A(f"v_lshrrev_b32 v{c1}, {bshift}, v{vb}")
        A(f"v_min_u32 v{c0}, 63, v{c0}")
        A(f"v_min_u32 v{c1}, 63, v{c1}")
        A(f"v_cmp_gt_i32 vcc, s{sT}, v0")
        A(f"v_lshlrev_b32 v{c0}, 2, v{c0}")
        A(f"v_lshlrev_b32 v{c1}, 2, v{c1}")
        A(f"v_cndmask_b32 v{one}, 0, 1, vcc")
        A(f"v_add_u32 v{y}, {base}, v{c0}")
        A(f"v_add_u32 v{z}, {base}, v{c1}")
        A(f"ds_add_rtn_u32 v{p0}, v{y}, v{one}")
        A(f"ds_add_rtn_u32 v{p1}, v{z}, v{one}")
        A(f"ds_read_b32 v{y}, v{x}")
        A("s_waitcnt lgkmcnt(0)")
        A("s_nop 0")
        A(f"v_add_u32_dpp v{z}, v{y}, v{y} row_shr:1 row_mask:0xf bank_mask:0xf bound_ctrl:0")
        for sh in (2, 4, 8):
            A("s_nop 1")
            A(f"v_add_u32_dpp v{z}, v{z}, v{z} row_shr:{sh} row_mask:0xf bank_mask:0xf bound_ctrl:0")
        A("s_nop 1")
        A(f"v_add_u32_dpp v{z}, v{z}, v{z} row_bcast:15 row_mask:0xa bank_mask:0xf")
        A("s_nop 1")
        A(f"v_add_u32_dpp v{z}, v{z}, v{z} row_bcast:31 row_mask:0xc bank_mask:0xf")
        A(f"v_sub_u32 v{z}, v{z}, v{y}")
        A(f"ds_bpermute_b32 v{c0}, v{c0}, v{z}")
        A(f"ds_bpermute_b32 v{c1}, v{c1}, v{z}")
        A(f"v_lshlrev_b32 v{x}, 1, v0")
        A(f"v_add_u32 v{y}, 1, v{x}")
        A("s_waitcnt lgkmcnt(0)")
        A(f"v_add_u32 v{c0}, v{c0}, v{p0}")
        A(f"v_add_u32 v{c1}, v{c1}, v{p1}")
        A(f"v_cndmask_b32 v{c0}, v{x}, v{c0}, vcc")
        A(f"v_cndmask_b32 v{c1}, v{y}, v{c1}, vcc")
        A(f"v_lshlrev_b32 v{c0}, 2, v{c0}")
        A(f"v_lshlrev_b32 v{c1}, 2, v{c1}")
        A(f"v_add_u32 v{c0}, {base+256}, v{c0}")
        A(f"v_add_u32 v{c1}, {base+256}, v{c1}")
        A(f"ds_write_b32 v{c0}, v{va}")
        A(f"ds_write_b32 v{c1}, v{vb}")
    A(HEADER.rstrip())
    A(f"; @launch grid=(256,1,1) block=(384,1,1) lds={LDS_TOTAL}")
    A(DOC)
    A('.amdgcn_target "amdgcn-amd-amdhsa--gfx950"')
    A(".text")
    A(f".globl {NAME}_kernel")
    A(".p2align 8")
    A(f".type {NAME}_kernel,@function")
    A(f"{NAME}_kernel:")
    A("s_load_dwordx8 s[4:11], s[0:1], 0")
    A("s_load_dwordx4 s[12:15], s[0:1], 32")
    A("s_load_dwordx2 s[30:31], s[0:1], 48    ; debug")
    A("s_cmp_ge_u32 s2, 256")
    A("s_cbranch_scc1 L_end")
    if stamps:
        A("s_memrealtime s[60:61]")
        A("s_load_dwordx2 s[68:69], s[0:1], 56")
    A("s_getpc_b64 s[28:29]")
    A("L_pc0:")
    A("v_subrev_u32 v2, 64, v0")
    A("v_lshlrev_b32 v2, 7, v2")
    A("v_cmp_gt_u32 vcc, L_end-L_pc0, v2")
    A("s_and_saveexec_b64 s[36:37], vcc")
    A("s_cbranch_execz L_nocpf")
    A("global_load_dword v39, v2, s[28:29]")
    A("L_nocpf:")
    A("s_mov_b64 exec, -1")
    A("s_lshr_b32 s32, s2, 3                  ; b")
    A("s_add_u32 s33, s2, s32")
    A("s_and_b32 s33, s33, 7                  ; h = (id + b) & 7")
    A("v_lshrrev_b32 v1, 6, v0")
    A("v_and_b32 v0, 63, v0                   ; lane")
    A("v_readfirstlane_b32 s34, v1            ; wave")
    A("s_lshl_b32 s35, s32, 9")
    A("v_lshlrev_b32 v1, 3, v0")
    A("s_cmp_lg_u32 s34, 0")
    A("s_cbranch_scc1 L_notloader")

    A("; ================================================================ loader")
    A("s_setprio 3")
    A("v_add_u32 v1, s35, v1")
    A("s_lshl_b32 s35, s32, 2")
    A("v_lshrrev_b32 v4, 4, v0")
    A("v_and_b32 v5, 15, v0")
    A("v_lshlrev_b32 v16, 2, v4")
    A("v_xor_b32 v16, v5, v16")
    A("v_lshlrev_b32 v16, 4, v16")
    A("v_lshl_add_u32 v12, v4, 8, v16")
    for j in range(1, 4):
        A(f"v_xor_b32 v{12+j}, {16*j}, v12")
    A("s_lshl_b32 s52, s32, 3")
    A("s_add_u32 s52, s52, s33")
    A("s_lshl_b32 s52, s52, 13")
    A("s_add_u32 s53, s52, 4096")
    A(f"s_mov_b32 s26, {32*32*8*128*2}")
    A("s_mov_b32 s27, 0x20000")
    A(f"s_mov_b32 m0, {QBUF}")
    A("s_waitcnt lgkmcnt(0)")
    A("global_load_dwordx2 v[2:3], v1, s[10:11]")
    A("s_load_dword s37, s[12:13], s35")
    if stamps: A("s_memrealtime s[62:63]")
    A("s_mov_b32 s24, s4"); A("s_mov_b32 s25, s5")
    for j in range(8):
        if j == 4:
            A("s_add_u32 m0, m0, 4096"); A("s_nop 0")
        A(f"buffer_load_dwordx4 v{12 + (j&3)}, s[24:27], s{52 + j//4} offen offset:{1024*(j&3)} nt lds")
    for base in (16, 20):
        A(f"s_mov_b32 s{base}, s6"); A(f"s_mov_b32 s{base+1}, s7")
        A(f"s_mov_b32 s{base+2}, {KBYTES}"); A(f"s_mov_b32 s{base+3}, 0x20000")
    A("v_lshl_add_u32 v8, v4, 11, v16")
    for j in range(1, 4):
        A(f"v_xor_b32 v{8+j}, {16*j}, v8")
        A(f"v_add_u32 v{8+j}, {(8192-1024)*j}, v{8+j}")
    A("v_lshlrev_b32 v21, 5, v0")
    A("s_lshl_b32 s36, s33, 8                 ; h*256")
    A(f"s_mov_b32 s59, {KBYTES}")
    A("s_mov_b32 s42, 0")
    A("s_mov_b32 s56, 0")
    A("s_mov_b32 s54, 128")
    A("s_mov_b32 s49, 0")
    A(f"v_mov_b32 v32, {NBUF}")
    A("s_waitcnt lgkmcnt(0)")
    A("s_cmp_gt_i32 s37, 0")
    A("s_cselect_b32 s37, s37, 2048")
    A("s_min_i32 s37, s37, 2048")
    A("v_sub_u32 v21, s37, v21")
    A("s_sub_u32 s48, s37, 1")
    A("s_lshr_b32 s48, s48, 5")
    A("v_med3_i32 v22, v21, 0, 16")
    A("v_subrev_u32 v21, 16, v21")
    A("v_med3_i32 v23, v21, 0, 16")
    A("s_and_b32 s41, s48, 3")
    A("s_add_u32 s41, s41, 1")
    A("s_mov_b32 s50, s41")
    A("s_mov_b32 s46, s41")
    A("s_mul_i32 s39, s37, 9")
    A("s_lshr_b32 s39, s39, 1")
    A("s_sub_i32 s39, s39, 1280")
    A(f"s_max_i32 s39, s39, {prior*256}")
    A("v_mov_b32 v33, s39")
    A("s_waitcnt vmcnt(8)")
    if stamps: A("s_memrealtime s[64:65]")
    A("v_lshlrev_b32 v2, 15, v2")
    A("v_lshlrev_b32 v3, 15, v3")
    A("v_lshl_add_u32 v4, v22, 11, v2")
    A("v_lshl_add_u32 v5, v23, 11, v3")
    A("v_add_u32 v2, s36, v2")
    A("v_min_u32 v4, s59, v4")
    A("v_add_u32 v3, s36, v3")
    A("v_min_u32 v5, s59, v5")
    A("ds_write_b32 v32, v33")
    Ns = list(range(nlo, nhi+1, nstep))
    assert n0 in Ns
    def version(NN, fall=False):
        q, p = (NN-1) // 8, (NN-1) % 8
        if valign and not fall:
            A(f".p2align {valign}")
            for _ in range(shift): A("s_nop 0")
        if first_align and fall: A(f".p2align {first_align}")
        A(f"L_ld{NN}:")
        A("v_readlane_b32 s52, v2, s48")
        A("v_readlane_b32 s18, v4, s48")
        A("v_readlane_b32 s53, v3, s48")
        A("v_readlane_b32 s22, v5, s48")
        A("s_mov_b32 m0, s49")
        A("s_sub_u32 s48, s48, 1")
        A("s_add_u32 s49, s49, 8192")
        A(f"s_sub_i32 s51, s42, {q}")
        A("s_add_u32 s42, s42, 1")
        for j in range(8):
            if j == 4: A("s_add_u32 m0, m0, 4096")
            if j == 6: A("ds_read_b32 v33, v32")
            if j == p: A("s_cmp_lt_i32 s51, s46")
            A(f"s_waitcnt vmcnt({NN-1})")
            if j == p:
                A(f"s_cbranch_scc1 L_ld{NN}_np")
                A("s_barrier")
                A("s_add_u32 s43, s43, s44")
                A(f"s_add_u32 s51, s51, {space}")
                A("s_max_i32 s46, s43, s51")
                A("s_mov_b32 s44, s45")
                A("s_mov_b32 s45, 4")
                A(f"L_ld{NN}_np:")
            srd = 16 if j < 4 else 20
            A(f"buffer_load_dwordx4 v{8 + (j&3)}, s[{srd}:{srd+3}], s{52 + j//4} offen offset:{1024*(j&3)} nt lds")
        A("s_sub_u32 s50, s50, 1")
        A("s_cmp_lg_u32 s50, 0")
        A(f"s_cbranch_scc1 L_ld{NN}")
        if not fall: A("s_branch L_next")
    version(n0, fall=True)
    A("s_cmp_lg_u32 s56, 0")
    A("s_cbranch_scc1 L_next")
    A("s_mov_b32 s40, s48")
    A("s_add_u32 s55, s48, s41")
    A("s_mov_b32 s58, s41")
    A("s_mov_b32 s43, s41")
    A("s_cmp_ge_i32 s40, 0")
    A("s_cselect_b32 s44, 4, 0")
    A("s_mov_b32 s45, s41")
    A("s_add_u32 s47, s55, 1")
    A("s_lshl_b32 s47, s47, 1")
    A("L_next:")
    A("s_waitcnt lgkmcnt(0)")
    A("v_readfirstlane_b32 s39, v33")
    A("L_next2:")
    A("s_add_u32 s56, s56, 1")
    A("s_cmp_lt_i32 s55, 0")
    A("s_cbranch_scc1 L_drain")
    A("s_and_b32 s49, s56, 3")
    A("s_lshl_b32 s49, s49, 15")
    A("s_bitcmp1_b32 s56, 0")
    A("s_cbranch_scc0 L_setV")
    A("s_cmp_ge_i32 s40, 0")
    A("s_cbranch_scc1 L_setK")
    A("s_cmp_eq_u32 s56, 1")
    A("s_cbranch_scc1 L_next2")
    A("L_setV:")
    A("s_mov_b32 s16, s8"); A("s_mov_b32 s17, s9"); A("s_mov_b32 s20, s8"); A("s_mov_b32 s21, s9")
    A("s_mov_b32 s48, s55")
    A("s_mov_b32 s50, s58")
    A("s_sub_i32 s55, s55, s58")
    A("s_mov_b32 s58, 4")
    A("s_branch L_disp")
    A("L_setK:")
    A("s_cmp_eq_u32 s56, 3")
    A("s_cbranch_scc0 L_setK2")
    A("v_lshlrev_b32 v1, 3, v0")
    A(f"v_add_u32 v1, {SBUF+256}, v1")
    A("ds_read_b64 v[2:3], v1")
    A("s_waitcnt lgkmcnt(0)")
    A("v_lshlrev_b32 v2, 15, v2")
    A("v_lshlrev_b32 v3, 15, v3")
    A("v_lshl_add_u32 v4, v22, 11, v2")
    A("v_lshl_add_u32 v5, v23, 11, v3")
    A("v_add_u32 v2, s36, v2")
    A("v_min_u32 v4, s59, v4")
    A("v_add_u32 v3, s36, v3")
    A("v_min_u32 v5, s59, v5")
    A("L_setK2:")
    A("s_mov_b32 s16, s6"); A("s_mov_b32 s17, s7"); A("s_mov_b32 s20, s6"); A("s_mov_b32 s21, s7")
    A("s_mov_b32 s48, s40")
    A("s_mov_b32 s50, 4")
    A("s_sub_i32 s40, s40, 4")
    A("L_disp:")
    A("s_add_u32 s54, s54, s39")
    A("s_lshr_b32 s57, s54, 8")
    A(f"s_and_b32 s54, s54, {256*nstep-1}")
    def dispatch(lst):
        if len(lst) == 1:
            A(f"s_branch L_ld{lst[0]}")
            return
        mid = len(lst)//2
        lab = f"L_disp{lst[mid]}_{lst[-1]}"
        A(f"s_cmp_ge_u32 s57, {lst[mid]}")
        if len(lst) - mid == 1:
            A(f"s_cbranch_scc1 L_ld{lst[mid]}")
            dispatch(lst[:mid])
        else:
            A(f"s_cbranch_scc1 {lab}")
            dispatch(lst[:mid])
            A(f"{lab}:")
            dispatch(lst[mid:])
    dispatch(Ns)
    for NN in Ns:
        if NN != n0: version(NN)
    A("L_drain:")
    A("s_sub_i32 s51, s47, s43")
    for c in range(6, 0, -1):
        A(f"L_drain{c}:")
        A(f"s_cmp_lt_i32 s51, {c}")
        A(f"s_cbranch_scc1 L_drain{c}_n")
        A(f"s_waitcnt vmcnt({8*c})")
        A("s_barrier")
        A("s_sub_i32 s51, s51, s44")
        A("s_mov_b32 s44, s45")
        A("s_mov_b32 s45, 4")
        A(f"s_branch L_drain{c}")
        A(f"L_drain{c}_n:")
    A("s_cmp_gt_u32 s47, 8")
    A("s_cbranch_scc1 L_last3")
    A("s_waitcnt vmcnt(0)")
    A("L_last3:")
    A("s_waitcnt vmcnt(8)")
    A("s_barrier")
    A("s_waitcnt vmcnt(0)")
    A("s_barrier")
    if stamps:
        A("s_branch L_stamp")
    A("s_endpgm")

    A("L_notloader:")
    A("s_cmp_lt_u32 s34, 5")
    A("s_cbranch_scc1 L_consumer")
    A("s_and_b32 s35, s33, 3")
    A("v_and_b32 v6, 31, v0")
    A("v_lshrrev_b32 v9, 5, v0")
    A("v_lshlrev_b32 v9, 4, v9")
    A("v_xor_b32 v9, v9, v6")
    A("v_lshlrev_b32 v12, 2, v6")
    A("v_lshlrev_b32 v13, 2, v9")
    A("v_add_u32 v15, s2, v6")
    A("v_and_b32 v15, 3, v15")
    A("v_cmp_eq_u32 vcc, 1, v15")
    A("v_mov_b32 v15, 0x100000")
    A("s_nop 0")
    A("v_cndmask_b32 v15, 0, v15, vcc")
    A("v_add_u32 v6, v6, v15")
    A("v_add_u32 v9, v9, v15")
    A("s_waitcnt lgkmcnt(0)")
    A("global_load_dword v7, v12, s[12:13]")
    A("global_load_dword v14, v13, s[12:13]")
    for base, p in ((16, 6), (24, 8)):
        A(f"s_mov_b32 s{base}, s{p}"); A(f"s_mov_b32 s{base+1}, s{p+1}")
        A(f"s_mov_b32 s{base+2}, {KBYTES}"); A(f"s_mov_b32 s{base+3}, 0x20000")
    A("v_lshrrev_b32 v8, 2, v0")
    A("v_lshlrev_b32 v8, 11, v8")
    A("v_and_b32 v10, 3, v0")
    A("v_lshl_add_u32 v8, v10, 6, v8          ; token*2048 + (l&3)*64")
    A("v_mov_b32 v19, 2048")
    A("v_mov_b32 v10, 0")
    A("s_getreg_b32 s48, hwreg(HW_REG_XCC_ID, 0, 3)")
    A(f"v_mov_b32 v32, {NBUF}")
    A("s_bitcmp1_b32 s48, 0")
    A(f"s_mov_b32 s49, {F(1.0+par)}")
    A(f"s_cselect_b32 s49, {F(1.0-par)}, s49")
    A("s_lshl_b32 s48, s48, 5")
    A("s_add_u32 s47, s48, s32")
    A("v_mov_b32 v17, s47")
    A("v_and_b32 v28, 7, v0")
    A("v_lshlrev_b32 v28, 2, v28")
    A("v_add_u32 v28, s48, v28")
    A("s_waitcnt vmcnt(0)")
    A("v_cmp_lt_i32 vcc, 0, v7")
    A("v_cmp_lt_i32 s[40:41], 0, v14")
    A("v_min_i32 v7, v7, v19")
    A("v_min_i32 v14, v14, v19")
    A("v_cndmask_b32 v7, v19, v7, vcc")
    A("v_cndmask_b32 v14, v19, v14, s[40:41]")
    A("v_lshl_add_u32 v11, v7, 5, v6")
    A("v_lshl_add_u32 v14, v14, 5, v9")
    A("v_add_u32_dpp v15, v7, v7 row_shr:1 row_mask:0xf bank_mask:0xf bound_ctrl:0")
    A("v_sub_u32 v12, v14, v11")
    for k in range(1, 16):
        A(f"v_sub_u32_dpp v{12 + (k&1)}, v14, v11 row_ror:{k} row_mask:0xf bank_mask:0xf")
        A(f"v_alignbit_b32 v10, v10, v{12 + ((k-1)&1)}, 31")
        if k in (2, 4, 6):
            A(f"v_add_u32_dpp v15, v15, v15 row_shr:{ {2:2,4:4,6:8}[k] } row_mask:0xf bank_mask:0xf bound_ctrl:0")
        if k == 8:
            A("v_add_u32_dpp v15, v15, v15 row_bcast:15 row_mask:0xa bank_mask:0xf")
    A("v_alignbit_b32 v10, v10, v13, 31")
    A("v_bcnt_u32_b32 v10, v10, 0")
    A("v_readlane_b32 s40, v15, 31")
    A("v_mov_b32 v12, v10")
    A("v_readlane_b32 s38, v7, s32")
    A("s_nop 0")
    A("v_permlane32_swap_b32 v10, v12")
    A("v_add_u32 v10, v10, v12                ; rank")
    A("v_cvt_f32_u32 v24, s40")
    A("v_readlane_b32 s41, v10, s32")
    A(f"v_mul_f32 v13, {F(pf_gain*pf_thr/1024)}, v24")
    A("v_cvt_f32_u32 v12, v7")
    A("v_rcp_f32 v24, v24")
    A("s_mul_i32 s36, s41, 86")
    A("s_lshr_b32 s36, s36, 8                 ; rank / 3")
    A("s_mul_i32 s44, s36, 3")
    A("s_sub_u32 s44, s41, s44                ; rank % 3")
    A("s_sub_u32 s41, 31, s36")
    A("s_cmp_eq_u32 s35, 1")
    A("s_cselect_b32 s36, 100, s44")
    A("v_cmp_eq_u32 vcc, s41, v10")
    A(f"v_mul_f32 v12, {F(pf_gain/32)}, v12")
    A("v_sub_f32 v12, v12, v13")
    A("v_cvt_i32_f32 v12, v12")
    A("v_lshrrev_b32 v13, 5, v7")
    A("v_min_i32 v12, v12, v13")
    A("s_ff1_i32_b32 s41, vcc_lo")
    A("s_and_b32 s41, s41, 31")
    A("v_readlane_b32 s45, v12, s41")
    A("v_readlane_b32 s55, v12, s32")
    A("v_readlane_b32 s56, v7, s41")
    A("s_lshl_b32 s43, s41, 9")
    A("v_add_u32 v1, s43, v1")
    A("global_load_dwordx2 v[2:3], v1, s[10:11]")
    A("v_cvt_f32_u32 v25, s38")
    A("s_add_u32 s37, s41, s2")
    A("s_and_b32 s37, s37, 7")
    A("s_lshl_b32 s37, s37, 8")
    A("s_add_u32 s36, s36, 1")
    A("s_sub_i32 s45, s45, s36")
    A("s_add_u32 s38, s38, 31")
    A("s_lshr_b32 s38, s38, 5                 ; tiles")
    A("s_add_u32 s42, s38, 3")
    A("s_lshr_b32 s42, s42, 2")
    A("s_lshl_b32 s42, s42, 1")
    A("v_mul_f32 v25, v25, v24")
    A(f"v_mov_b32 v26, {F(bias*256)}")
    A(f"v_mul_f32 v25, {F(alpha*256*32)}, v25")
    A("v_add_f32 v26, v26, v25")
    A("v_mul_f32 v26, s49, v26")
    A("s_max_i32 s55, s55, 0")
    A("s_cmp_eq_u32 s35, 1")
    A("s_cselect_b32 s55, s55, 0")
    A("v_cvt_u32_f32 v30, v26")
    A("v_cvt_f32_u32 v12, s38")
    A("v_cvt_f32_u32 v16, s55")
    A(f"v_mov_b32 v18, {F(hitw - 1.0)}")
    A("v_fma_f32 v12, v16, v18, v12")
    A("v_rcp_f32 v12, v12")
    A(f"s_mul_i32 s46, s42, {256 - int(pub_start*256)}")
    A("s_lshr_b32 s46, s46, 8")
    A(f"s_mul_i32 s50, s42, {256 - int(fb_start*256)}")
    A("s_lshr_b32 s50, s50, 8")
    A("v_mov_b32 v19, -1")
    A("s_mov_b32 s51, 0")
    A("s_sub_u32 s42, s42, 2")
    A("s_sub_u32 s56, s56, 1")
    A("s_lshr_b32 s56, s56, 7")
    A("s_lshl_b32 s56, s56, 2")
    A("s_sub_i32 s56, s56, 4")
    A("s_barrier")
    A("ds_write_b32 v32, v30")
    A("s_cmp_lt_i32 s45, 0")
    A("s_cbranch_scc1 L_pf_nosort")
    A("s_waitcnt vmcnt(0)")
    sort_pages(2, 3, 56, SBUF+768, 34, "p")
    A("v_lshlrev_b32 v1, 3, v0")
    A(f"v_add_u32 v1, {SBUF+768+256}, v1")
    A("ds_read_b64 v[2:3], v1")
    A("L_pf_nosort:")
    A("s_barrier")
    A("s_waitcnt vmcnt(0) lgkmcnt(0)")
    A("v_lshlrev_b32 v2, 15, v2")
    A("v_lshlrev_b32 v3, 15, v3")
    A("v_add_u32 v2, s37, v2")
    A("v_add_u32 v3, s37, v3")
    A("L_pf_loop:")
    A("s_cmp_eq_u32 s51, 0")
    A("s_cbranch_scc1 L_pf_nofb")
    A("s_waitcnt vmcnt(0)")
    A("v_msad_u8 v33, v19, v30, 0")
    A("v_sad_u8 v30, v30, 0, 0")
    A("v_lshl_add_u32 v30, v33, 16, v30")
    A("s_nop 1")
    for sh in (1, 2, 4):
        A(f"v_add_u32_dpp v30, v30, v30 row_ror:{sh} row_mask:0xf bank_mask:0xf")
        if sh != 4: A("s_nop 1")
    A("v_lshrrev_b32 v33, 16, v30")
    A("v_and_b32 v30, 0xffff, v30")
    A("v_add_u32 v30, v30, v33")
    A("v_cvt_f32_u32 v30, v30")
    A("v_cvt_f32_u32 v33, v33")
    A("v_rcp_f32 v30, v30")
    A("s_mov_b32 s51, 0")
    A("v_mul_f32 v30, v30, v33")
    A(f"v_max_f32 v33, {F(fb_dmin)}, v30")
    A("v_rcp_f32 v33, v33")
    A("v_sub_f32 v30, v31, v30")
    A(f"v_mul_f32 v30, {F(fb_g)}, v30")
    A("v_fma_f32 v30, v30, v33, 1.0")
    A(f"v_max_f32 v30, {F(fb_lo)}, v30")
    A(f"v_min_f32 v30, {F(fb_hi)}, v30")
    A("v_mul_f32 v30, v30, v26")
    A("v_cvt_u32_f32 v30, v30")
    A("ds_write_b32 v32, v30")
    A("L_pf_nofb:")
    A("s_max_i32 s47, s45, 0")
    A("s_lshl_b32 s54, s42, 1")
    A("v_cvt_f32_u32 v15, s54")
    A("v_readlane_b32 s52, v2, s47")
    A("v_readlane_b32 s53, v3, s47")
    A(f"v_subrev_f32 v14, {F(pub_off/2)}, v15")
    A("v_min_f32 v13, v15, v16")
    A("v_fma_f32 v15, v13, v18, v15")
    A("v_min_f32 v13, v14, v16")
    A("v_fma_f32 v14, v13, v18, v14")
    A("v_mul_f32 v14, v14, v12")
    A(f"v_mov_b32 v13, {F(255.5)}")
    A(f"v_mul_f32 v14, {F(-255.0)}, v14")
    A("v_add_f32 v14, v14, v13")
    A("v_min_f32 v14, v14, v13")
    A("v_cvt_u32_f32 v14, v14")
    A("s_cmp_gt_u32 s42, s46")
    A("s_cbranch_scc1 L_pf_nopub")
    A("s_mov_b64 exec, 1")
    A("global_store_byte v17, v14, s[30:31]")
    A("s_mov_b64 exec, -1")
    A("s_cmp_gt_u32 s42, s50")
    A("s_cbranch_scc1 L_pf_nopub")
    A("s_waitcnt lgkmcnt(0)")
    A("global_load_dword v30, v28, s[30:31] nt")
    A("v_mul_f32 v31, v15, v12")
    A("s_mov_b32 s51, 1")
    A("L_pf_nopub:")
    A("s_cmp_lt_i32 s45, 0")
    A("s_cbranch_scc1 L_pf_nov")
    A("buffer_load_dword v20, v8, s[16:19], s52 offen")
    A("buffer_load_dword v21, v8, s[16:19], s53 offen")
    A("s_waitcnt vmcnt(0)")
    A("buffer_load_dword v22, v8, s[24:27], s52 offen")
    A("buffer_load_dword v23, v8, s[24:27], s53 offen")
    A("s_sub_i32 s45, s45, 3")
    A("L_pf_nov:")
    A("s_cmp_le_i32 s42, 1")
    A("s_cbranch_scc1 L_pf_exit")
    A("s_sub_u32 s42, s42, 1")
    A("s_barrier")
    A("s_branch L_pf_loop")
    A("L_pf_exit:")
    A("s_endpgm")

    P0, S0, O0, Q0, F0, B0, X0, KA = 40, 48, 64, 80, 112, 144, 176, 16
    VA0, VA1, vM, vL, vMC = 24, 25, 28, 29, 33
    vPW, vPR, vMW, vMR = 4, 5, 6, 7
    A("; ================================================================ consumers")
    A("L_consumer:")
    A("s_sub_u32 s34, s34, 1                  ; cw")
    A("v_add_u32 v30, s35, v1")
    A("v_and_b32 v1, 31, v0")
    A("v_lshrrev_b32 v2, 5, v0                ; hf")
    A("s_lshl_b32 s35, s32, 16")
    A("s_lshl_b32 s36, s33, 13")
    A("s_add_u32 s35, s35, s36")
    A("s_lshl_b32 s36, s32, 2")
    A("s_waitcnt lgkmcnt(0)")
    A("s_load_dword s37, s[12:13], s36")
    A("s_cmp_lg_u32 s34, 3")
    A("s_cbranch_scc1 L_nobt")
    A(f"global_load_dwordx2 v[{B0}:{B0+1}], v30, s[10:11]")
    A("L_nobt:")
    A("s_lshl_b32 s46, s34, 13                ; cw*8192")
    A("v_and_b32 v8, 3, v0")
    A("v_bfe_u32 v9, v0, 2, 2")
    A("v_lshl_add_u32 v10, v8, 2, v9")
    A("v_xor_b32 v10, v10, v2")
    A("v_lshlrev_b32 v10, 4, v10")
    A("v_lshl_add_u32 v10, v1, 8, v10")
    A(f"v_add_u32 v{KA}, s46, v10")
    A(f"v_add_u32 v{S0}, {QBUF}, v10")
    for kk in range(1, 8):
        A(f"v_xor_b32 v{S0+kk}, {32*kk}, v{S0}")
    for kk in range(1, 8):
        A(f"v_xor_b32 v{KA+kk}, {32*kk}, v{KA}")
    A("v_lshl_add_u32 v10, v2, 2, v9")
    A("v_lshlrev_b32 v10, 8, v10")
    A("v_xor_b32 v11, s34, v9")
    A("v_lshl_add_u32 v10, v11, 6, v10")
    A("v_bfe_u32 v11, v0, 4, 1")
    A("v_bfe_u32 v12, v0, 1, 1")
    A("v_lshl_add_u32 v11, v11, 1, v12")
    A("v_xor_b32 v11, v11, v2")
    A("v_lshl_add_u32 v10, v11, 4, v10")
    A("v_and_b32 v11, 1, v0")
    A(f"v_lshl_add_u32 v{VA0}, v11, 3, v10")
    A(f"v_xor_b32 v{VA1}, 32, v{VA0}")
    A("v_lshlrev_b32 v10, 4, v0")
    A(f"v_add_u32 v{vPR}, {PBUF}, v10")
    A("s_lshl_b32 s47, s34, 11")
    A(f"v_add_u32 v{vPW}, s47, v{vPR}")
    A("v_lshlrev_b32 v11, 5, v1")
    A(f"v_add_u32 v{vMR}, {MBUF}, v11")
    A("s_lshl_b32 s47, s34, 3")
    A(f"v_lshl_add_u32 v{vMW}, v2, 2, v{vMR}")
    A(f"v_add_u32 v{vMW}, s47, v{vMW}")
    for i in range(16):
        A(f"v_mov_b32 v{O0+i}, 0")
    A(f"v_mov_b32 v{vM}, {F(-1e30)}")
    A(f"v_mov_b32 v{vMC}, {F(-1e30)}")
    A(f"v_mov_b32 v{vL}, 0")
    A("v_mov_b32 v15, 0xff800000")
    A("s_lshl_b32 s47, s34, 6")
    A("s_add_u32 s47, s47, s35")
    A("v_lshrrev_b32 v36, 2, v0")
    A("v_and_b32 v37, 3, v0")
    A("v_lshlrev_b32 v3, 8, v36")
    A("v_lshl_add_u32 v3, v37, 4, v3")
    A("v_add_u32 v3, s47, v3")
    A("s_lshl_b32 s47, s34, 11")
    A(f"s_add_u32 s47, s47, {QBUF}")
    A("v_bfe_u32 v38, v0, 3, 2")
    A("v_xor_b32 v37, v37, v38")
    A("v_lshlrev_b32 v37, 4, v37")
    A("v_lshl_add_u32 v37, v36, 6, v37")
    A("v_add_u32 v13, s47, v37")
    A("v_bfe_u32 v38, v0, 1, 2")
    A("v_lshlrev_b32 v38, 4, v38")
    A("v_lshl_add_u32 v38, v1, 6, v38")
    A("v_lshl_add_u32 v38, v2, 3, v38")
    A("v_add_u32 v36, s47, v38")
    A("v_xor_b32 v37, 16, v36")
    A("v_xor_b32 v38, 32, v36")
    A("v_xor_b32 v12, 48, v36")
    A("s_waitcnt lgkmcnt(0)")
    A(f"s_mov_b32 s48, {F(128**-0.5*math.log2(math.e))}             ; D^-0.5 * log2(e)")
    A("s_cmp_gt_i32 s37, 0")
    A("s_cselect_b32 s48, s48, 0")
    A("s_cselect_b32 s37, s37, 2048")
    A("s_min_i32 s37, s37, 2048")
    A("s_add_u32 s38, s37, 31")
    A("s_lshr_b32 s38, s38, 5                 ; tiles")
    A("s_sub_u32 s40, s38, 1")
    A("s_and_b32 s41, s40, 3")
    A("s_add_u32 s41, s41, 1                  ; m")
    A("s_add_u32 s42, s38, 3")
    A("s_lshr_b32 s42, s42, 2")
    A("s_lshl_b32 s40, s40, 5")
    A("s_sub_u32 s40, s37, s40")
    A("s_cmp_eq_u32 s34, 0")
    A("s_cselect_b32 s40, s40, 64")
    A("s_cmp_lt_u32 s34, s41")
    A("s_cselect_b32 s40, s40, 0")
    A("v_lshlrev_b32 v14, 2, v2")
    A("v_sub_u32 v14, s40, v14")
    A("s_cbranch_scc1 L_active")
    A("v_add_u32 v11, s46, v10")
    A("v_add_u32 v11, 0x10000, v11")
    for i in range(8):
        A(f"ds_write_b128 v11, v[{O0}:{O0+3}] offset:{1024*i}")
    A("L_active:")
    A("s_cmp_lg_u32 s34, 3")
    A("s_cbranch_scc1 L_nosort")
    A("s_sub_i32 s43, s38, s41")
    A("s_sub_i32 s43, s43, 4")
    A("s_waitcnt vmcnt(0)")
    sort_pages(B0, B0+1, 43, SBUF, B0+2, "o")
    A("L_nosort:")
    A("s_mov_b32 s43, 1")
    A("s_mov_b32 s44, 0x8000")
    A("s_mov_b32 s45, 0")
    A("s_waitcnt vmcnt(0) lgkmcnt(0)")
    A("s_barrier")
    if stamps:
        A("s_memrealtime s[62:63]")
        A("s_waitcnt lgkmcnt(0)")
    for kk in range(8):
        A(f"ds_read_b128 v[{Q0+4*kk}:{Q0+4*kk+3}], v{S0+kk}")
    A("s_branch L_X")

    def e_ops():
        L = []
        L.append(f"v_max3_f32 v30, v{X0}, v{X0+1}, v{X0+2}")
        L.append(f"v_max3_f32 v31, v{X0+3}, v{X0+4}, v{X0+5}")
        L.append(f"v_max3_f32 v30, v30, v{X0+6}, v{X0+7}")
        L.append(f"v_max3_f32 v{vM}, v30, v31, v{vM}")
        L.append(f"v_mul_f32 v32, s48, v{vM}")
        L.append(f"v_sub_f32 v31, v{vMC}, v32")
        L.append(f"v_mov_b32 v{vMC}, v32")
        L.append("v_exp_f32 v34, v31")
        for g in range(4):
            for v in range(4*g, 4*g+4):
                L.append(f"v_fma_f32 v{S0+v}, v{S0+v}, s48, -v32")
            if g == 0: L.append(f"v_mul_f32 v{vL}, v{vL}, v34")
            for v in range(4*g, 4*g+4):
                L.append(f"v_exp_f32 v{S0+v}, v{S0+v}")
            if g:
                p = g - 1
                L.append(f"v_cvt_pk_bf16_f32 v{P0+2*p}, v{S0+4*p}, v{S0+4*p+1}")
                L.append(f"v_cvt_pk_bf16_f32 v{P0+2*p+1}, v{S0+4*p+2}, v{S0+4*p+3}")
                if p == 1: L.append(f"ds_write_b128 v{vPW}, v[{P0}:{P0+3}]")
                L.append(f"v_add_f32 v30, v{S0+4*p}, v{S0+4*p+1}")
                L.append(f"v_add_f32 v31, v{S0+4*p+2}, v{S0+4*p+3}")
                L.append(f"v_add_f32 v{vL}, v{vL}, v30")
                L.append(f"v_add_f32 v{vL}, v{vL}, v31")
        L.append(f"v_cvt_pk_bf16_f32 v{P0+6}, v{S0+12}, v{S0+13}")
        L.append(f"v_cvt_pk_bf16_f32 v{P0+7}, v{S0+14}, v{S0+15}")
        L.append(f"ds_write_b128 v{vPW}, v[{P0+4}:{P0+7}] offset:1024")
        L.append(f"v_add_f32 v30, v{S0+12}, v{S0+13}")
        L.append(f"v_add_f32 v31, v{S0+14}, v{S0+15}")
        L.append(f"v_add_f32 v{vL}, v{vL}, v30")
        L.append(f"v_add_f32 v{vL}, v{vL}, v31")
        return L
    def rdP(i): return f"ds_read_b128 v[{B0+4*i}:{B0+4*i+3}], v{vPR} offset:{2048*(i>>1) + 1024*(i&1)}"
    def rdV(i):
        r = F0 + 4*i
        return [f"ds_read_b64_tr_b16 v[{r}:{r+1}], v26 offset:{8192*(i>>1) + 4096*(i&1)}",
                f"ds_read_b64_tr_b16 v[{r+2}:{r+3}], v27 offset:{8192*(i>>1) + 4096*(i&1) + 2048}"]
    def rdX(): return [f"ds_read_b128 v[{X0}:{X0+3}], v{vMR}", f"ds_read_b128 v[{X0+4}:{X0+7}], v{vMR} offset:16"]
    def mm(i):
        r = F0 + 4*i
        return f"v_mfma_f32_32x32x16_bf16 v[{O0}:{O0+15}], v[{r}:{r+3}], v[{B0+4*i}:{B0+4*i+3}], v[{O0}:{O0+15}]"
    def vaddr():
        A("s_add_u32 s45, s45, 1")
        A("s_and_b32 s47, s45, 3")
        A("s_lshl_b32 s47, s47, 15")
        A(f"v_add_u32 v26, s47, v{VA0}")
        A(f"v_add_u32 v27, s47, v{VA1}")
    A("L_E0:")
    for x in rdX(): A(x)
    A("s_waitcnt lgkmcnt(0)")
    for x in e_ops(): A(x)
    A("s_branch L_tail")
    A("L_XB:")
    A("s_waitcnt lgkmcnt(0)")
    A("s_barrier")
    A("s_add_u32 s45, s45, 1")
    A("L_X:")
    for kk in range(8):
        A(f"ds_read_b128 v[{F0+4*kk}:{F0+4*kk+3}], v{KA+kk}")
    for kk in range(8):
        A(f"s_waitcnt lgkmcnt({7-kk})")
        c = "0" if kk == 0 else f"v[{S0}:{S0+15}]"
        A(f"v_mfma_f32_32x32x16_bf16 v[{S0}:{S0+15}], v[{F0+4*kk}:{F0+4*kk+3}], v[{Q0+4*kk}:{Q0+4*kk+3}], {c}")
    for i in range(8): A(f"v_xor_b32 v{KA+i}, s44, v{KA+i}")
    A("s_mov_b32 s44, 0x10000")
    vaddr()
    A("s_cmp_eq_u32 s43, 0")
    A("s_cbranch_scc1 L_nomask")
    for v in range(16):
        A(f"v_cmp_lt_i32 vcc, {8*(v>>2)+(v&3)}, v14")
        A("s_nop 1")
        A(f"v_cndmask_b32 v{S0+v}, v15, v{S0+v}, vcc")
    A("L_nomask:")
    A(f"v_max3_f32 v30, v{S0}, v{S0+1}, v{S0+2}")
    A(f"v_max3_f32 v31, v{S0+3}, v{S0+4}, v{S0+5}")
    A(f"v_max3_f32 v30, v30, v{S0+6}, v{S0+7}")
    A(f"v_max3_f32 v31, v31, v{S0+8}, v{S0+9}")
    A(f"v_max3_f32 v30, v30, v{S0+10}, v{S0+11}")
    A(f"v_max3_f32 v31, v31, v{S0+12}, v{S0+13}")
    A(f"v_max3_f32 v30, v30, v{S0+14}, v{S0+15}")
    A("v_max_f32 v30, v30, v31")
    A(f"ds_write_b32 v{vMW}, v30")
    A(f"v_xor_b32 v{vMW}, 0x400, v{vMW}")
    A("s_mov_b32 s43, 0")
    A("s_waitcnt lgkmcnt(0)")
    A("s_barrier")
    A("s_cbranch_scc0 L_E0")
    st = dict(n=0, done={})
    def emit_lds(x, tag=None):
        A(x); st["n"] += 1
        if tag is not None: st["done"][tag] = st["n"]
    for x in rdX(): emit_lds(x, "X")
    AH = 4
    for i in range(AH):
        emit_lds(rdP(i)); v = rdV(i); emit_lds(v[0]); emit_lds(v[1], i)
    E = e_ops()
    pos = [0]
    A(f"s_waitcnt lgkmcnt({st['n'] - st['done']['X']})")
    def take(n):
        k = 0
        while pos[0] < len(E) and k < n:
            x = E[pos[0]]; pos[0] += 1
            if x.startswith("ds_"): emit_lds(x)
            else: A(x)
            k += 2 if x.startswith("v_exp") else 1
    take(8)
    for i in range(8):
        A(f"s_waitcnt lgkmcnt({st['n'] - st['done'][i]})")
        A(mm(i))
        if i + AH < 8:
            emit_lds(rdP(i+AH)); v = rdV(i+AH); emit_lds(v[0]); emit_lds(v[1], i+AH)
        if i < 7: take(egap)
    rest = len(E) - pos[0]
    take(1000)
    A(f"v_xor_b32 v{vPR}, 0x2000, v{vPR}")
    pad = 12 - rest - 1
    if pad > 0: A(f"s_nop {pad-1}")
    for i in range(0, 16, 2):
        A(f"v_pk_mul_f32 v[{O0+i}:{O0+i+1}], v[{O0+i}:{O0+i+1}], v[34:35] op_sel_hi:[1,0]")
    A("L_tail:")
    A(f"v_xor_b32 v{vMR}, 0x400, v{vMR}")
    A(f"v_xor_b32 v{vPW}, 0x2000, v{vPW}")
    A("s_sub_u32 s42, s42, 1")
    A("s_cmp_eq_u32 s42, 0")
    A("s_cbranch_scc1 L_last")
    A("s_cmp_eq_u32 s45, 1")
    A("s_cbranch_scc1 L_X")
    A("s_branch L_XB")
    A("L_last:")
    A(f"v_or_b32 v{vMW}, 0x400, v{vMW}")
    A(f"v_or_b32 v{vMR}, 0x400, v{vMR}")
    A(f"ds_write_b32 v{vMW}, v{vL} offset:1024")
    A(f"v_add_u32 v{vMR}, 1024, v{vMR}")
    vaddr()
    A("s_waitcnt lgkmcnt(0)")
    A("s_barrier")
    NF = 6
    st["n"] = 0; st["done"] = {}
    for i in range(AH):
        emit_lds(rdP(i)); v = rdV(i); emit_lds(v[0]); emit_lds(v[1], i)
    extra = False
    for i in range(NF):
        A(f"s_waitcnt lgkmcnt({st['n'] - st['done'][i]})")
        A(mm(i))
        if i + AH < NF:
            emit_lds(rdP(i+AH)); v = rdV(i+AH); emit_lds(v[0]); emit_lds(v[1], i+AH)
        elif not extra:
            for k in range(NF, 8): emit_lds(rdP(k))
            for x in rdX(): emit_lds(x)
            extra = True
    A("s_waitcnt lgkmcnt(0)")
    A(f"v_add_f32 v30, v{X0}, v{X0+1}")
    A(f"v_add_f32 v31, v{X0+2}, v{X0+3}")
    A(f"v_add_f32 v32, v{X0+4}, v{X0+5}")
    A(f"v_add_f32 v33, v{X0+6}, v{X0+7}")
    A("v_add_f32 v30, v30, v31")
    A("v_add_f32 v32, v32, v33")
    A("v_add_f32 v30, v30, v32")
    A("v_rcp_f32 v34, v30")
    A("v_add_u32 v31, 4096, v3")
    A("s_barrier")
    for k in range(NF, 8):
        for x in rdV(k): A(x)
    for k in range(NF, 8):
        A(f"s_waitcnt lgkmcnt({2*(7-k)})")
        A(mm(k))
    A("s_nop 11")
    if stamps:
        A("s_memrealtime s[64:65]")
    for i in range(4):
        for k in (0, 2):
            r = O0 + 4*i + k
            A(f"v_pk_mul_f32 v[{r}:{r+1}], v[{r}:{r+1}], v[34:35] op_sel_hi:[1,0]")
        A(f"v_cvt_pk_bf16_f32 v{P0+2*i}, v{O0+4*i}, v{O0+4*i+1}")
        A(f"v_cvt_pk_bf16_f32 v{P0+2*i+1}, v{O0+4*i+2}, v{O0+4*i+3}")
        A(f"ds_write_b64 v{(36,37,38,12)[i]}, v[{P0+2*i}:{P0+2*i+1}]")
    A(f"ds_read_b128 v[{S0}:{S0+3}], v13")
    A(f"ds_read_b128 v[{S0+4}:{S0+7}], v13 offset:1024")
    A("s_waitcnt lgkmcnt(1)")
    A(f"global_store_dwordx4 v3, v[{S0}:{S0+3}], s[14:15]")
    A("s_waitcnt lgkmcnt(0)")
    A(f"global_store_dwordx4 v31, v[{S0+4}:{S0+7}], s[14:15]")
    if stamps:
        A("s_add_u32 s34, s34, 1")
        A("s_waitcnt vmcnt(0)")
        A("L_stamp:")
        A("s_memrealtime s[66:67]")
        A("s_mul_i32 s35, s2, 5"); A("s_add_u32 s35, s35, s34"); A("s_lshl_b32 s35, s35, 5")
        A("s_waitcnt lgkmcnt(0)")
        A("v_mov_b32 v12, s60"); A("v_mov_b32 v13, s61"); A("v_mov_b32 v14, s66"); A("v_mov_b32 v15, s67")
        A("v_mov_b32 v20, s62"); A("v_mov_b32 v21, s63"); A("v_mov_b32 v22, s64"); A("v_mov_b32 v23, s65")
        A("v_mov_b32 v16, s35")
        A("v_cmp_eq_u32 vcc, 0, v0")
        A("s_and_saveexec_b64 s[46:47], vcc")
        A("global_store_dwordx4 v16, v[12:15], s[68:69]")
        A("global_store_dwordx4 v16, v[20:23], s[68:69] offset:16")
        A("s_waitcnt vmcnt(0)")
    A("L_end:")
    A("s_endpgm")
    A('.section .rodata,"a"')
    A(".p2align 6")
    A(f".amdhsa_kernel {NAME}_kernel")
    A("  .amdhsa_next_free_vgpr 184")
    A("  .amdhsa_next_free_sgpr 72")
    A("  .amdhsa_accum_offset 184")
    A("  .amdhsa_group_segment_fixed_size 0")
    A("  .amdhsa_kernarg_size 64")
    A("  .amdhsa_user_sgpr_count 2")
    A("  .amdhsa_user_sgpr_kernarg_segment_ptr 1")
    A("  .amdhsa_system_sgpr_workgroup_id_x 1")
    A(".end_amdhsa_kernel")
    return "\n".join(o) + "\n"

if __name__ == "__main__":
    out = sys.argv[1]
    kw = {}
    for a in sys.argv[2:]:
        k, v = a.split("=", 1)
        try: v = json.loads(v)
        except Exception: pass
        kw[k] = v
    open(out, "w").write(gen(**kw))
```

```python
import sys, struct, math, json
NAME = "standalone__paged_block_table_kv_pagedattention__sampling"
KBYTES = 4100*32768
def f2u(x): return struct.unpack("<I", struct.pack("<f", x))[0]
def F(x): return hex(f2u(x))
HEADER = open("cdna_kernels/%s.s.ref" % NAME).read().split("; Override")[0]

PBUF = 131072
MBUF = PBUF + 16384
LBUF = MBUF + 2048
QBUF = LBUF + 1024
NBUF = QBUF + 8192
SBUF = NBUF + 256
ABUF = SBUF + 1536
LDS_TOTAL = ABUF + 2048

DOC = """; Design
;   The aux wave and d_debug only influence speed, never the result."""

def gen(nlo=8, nhi=34, nstep=2, n0=32, alpha=24.0, bias=-3.0, par=0.01, prior=20,
        pf_thr=1.0, pf_gain=2.0, hitw=0.6, space=3,
        fb_g=1.3, fb_dmin=0.15, fb_lo=0.8, fb_hi=1.25, fb_start=0.15, pub_start=0.08, pub_off=2.0,
        egap=8, stamps=False, valign=6, first_align=0, shift=0, bshift=6, pre=3, ramp=0.0, ramp0=0.35, mid=1, hb=0.15):
    o = []
    A = o.append
    def sort_pages(va, vb, sT, base, t, lab):
        c0, c1, p0, p1, x, y, z, one = range(t, t+8)
        A(f"v_lshlrev_b32 v{x}, 2, v0")
        A(f"v_mov_b32 v{y}, 0")
        A(f"v_add_u32 v{x}, {base}, v{x}")
        A(f"v_lshrrev_b32 v{c0}, {bshift}, v{va}")
        A(f"ds_write_b32 v{x}, v{y}")
        A(f"v_lshrrev_b32 v{c1}, {bshift}, v{vb}")
        A(f"v_min_u32 v{c0}, 63, v{c0}")
        A(f"v_min_u32 v{c1}, 63, v{c1}")
        A(f"v_cmp_gt_i32 vcc, s{sT}, v0")
        A(f"v_lshlrev_b32 v{c0}, 2, v{c0}")
        A(f"v_lshlrev_b32 v{c1}, 2, v{c1}")
        A(f"v_cndmask_b32 v{one}, 0, 1, vcc")
        A(f"v_add_u32 v{y}, {base}, v{c0}")
        A(f"v_add_u32 v{z}, {base}, v{c1}")
        A(f"ds_add_rtn_u32 v{p0}, v{y}, v{one}")
        A(f"ds_add_rtn_u32 v{p1}, v{z}, v{one}")
        A(f"ds_read_b32 v{y}, v{x}")
        A("s_waitcnt lgkmcnt(0)")
        A("s_nop 0")
        A(f"v_add_u32_dpp v{z}, v{y}, v{y} row_shr:1 row_mask:0xf bank_mask:0xf bound_ctrl:0")
        for sh in (2, 4, 8):
            A("s_nop 1")
            A(f"v_add_u32_dpp v{z}, v{z}, v{z} row_shr:{sh} row_mask:0xf bank_mask:0xf bound_ctrl:0")
        A("s_nop 1")
        A(f"v_add_u32_dpp v{z}, v{z}, v{z} row_bcast:15 row_mask:0xa bank_mask:0xf")
        A("s_nop 1")
        A(f"v_add_u32_dpp v{z}, v{z}, v{z} row_bcast:31 row_mask:0xc bank_mask:0xf")
        A(f"v_sub_u32 v{z}, v{z}, v{y}")
        A(f"ds_bpermute_b32 v{c0}, v{c0}, v{z}")
        A(f"ds_bpermute_b32 v{c1}, v{c1}, v{z}")
        A(f"v_lshlrev_b32 v{x}, 1, v0")
        A(f"v_add_u32 v{y}, 1, v{x}")
        A("s_waitcnt lgkmcnt(0)")
        A(f"v_add_u32 v{c0}, v{c0}, v{p0}")
        A(f"v_add_u32 v{c1}, v{c1}, v{p1}")
        A(f"v_cndmask_b32 v{c0}, v{x}, v{c0}, vcc")
        A(f"v_cndmask_b32 v{c1}, v{y}, v{c1}, vcc")
        A(f"v_lshlrev_b32 v{c0}, 2, v{c0}")
        A(f"v_lshlrev_b32 v{c1}, 2, v{c1}")
        A(f"v_add_u32 v{c0}, {base+256}, v{c0}")
        A(f"v_add_u32 v{c1}, {base+256}, v{c1}")
        A(f"ds_write_b32 v{c0}, v{va}")
        A(f"ds_write_b32 v{c1}, v{vb}")
    A(HEADER.rstrip())
    A(f"; @launch grid=(256,1,1) block=(384,1,1) lds={LDS_TOTAL}")
    A(DOC)
    A('.amdgcn_target "amdgcn-amd-amdhsa--gfx950"')
    A(".text")
    A(f".globl {NAME}_kernel")
    A(".p2align 8")
    A(f".type {NAME}_kernel,@function")
    A(f"{NAME}_kernel:")
    A("s_load_dwordx8 s[4:11], s[0:1], 0")
    A("s_load_dwordx4 s[12:15], s[0:1], 32")
    A("s_load_dwordx2 s[30:31], s[0:1], 48    ; debug")
    A("s_cmp_ge_u32 s2, 256")
    A("s_cbranch_scc1 L_end")
    if stamps:
        A("s_memrealtime s[60:61]")
        A("s_load_dwordx2 s[68:69], s[0:1], 56")
    A("s_getpc_b64 s[28:29]")
    A("L_pc0:")
    A("v_subrev_u32 v2, 64, v0")
    A("v_lshlrev_b32 v2, 7, v2")
    A("v_cmp_gt_u32 vcc, L_end-L_pc0, v2")
    A("s_and_saveexec_b64 s[36:37], vcc")
    A("s_cbranch_execz L_nocpf")
    A("global_load_dword v39, v2, s[28:29]")
    A("L_nocpf:")
    A("s_mov_b64 exec, -1")
    A("s_lshr_b32 s32, s2, 3                  ; b")
    A("s_add_u32 s33, s2, s32")
    A("s_and_b32 s33, s33, 7                  ; h = (id + b) & 7")
    A("v_lshrrev_b32 v1, 6, v0")
    A("v_and_b32 v0, 63, v0                   ; lane")
    A("v_readfirstlane_b32 s34, v1            ; wave")
    A("s_lshl_b32 s35, s32, 9")
    A("v_lshlrev_b32 v1, 3, v0")
    A("s_cmp_lg_u32 s34, 0")
    A("s_cbranch_scc1 L_notloader")

    A("; ================================================================ loader")
    A("s_setprio 3")
    A("v_add_u32 v1, s35, v1")
    A("s_lshl_b32 s35, s32, 2")
    A("v_lshrrev_b32 v4, 4, v0")
    A("v_and_b32 v5, 15, v0")
    A("v_lshlrev_b32 v16, 2, v4")
    A("v_xor_b32 v16, v5, v16")
    A("v_lshlrev_b32 v16, 4, v16")
    A("v_lshl_add_u32 v12, v4, 8, v16")
    for j in range(1, 4):
        A(f"v_xor_b32 v{12+j}, {16*j}, v12")
    A("s_lshl_b32 s52, s32, 3")
    A("s_add_u32 s52, s52, s33")
    A("s_lshl_b32 s52, s52, 13")
    A("s_add_u32 s53, s52, 4096")
    A(f"s_mov_b32 s26, {32*32*8*128*2}")
    A("s_mov_b32 s27, 0x20000")
    A(f"s_mov_b32 m0, {QBUF}")
    A("s_waitcnt lgkmcnt(0)")
    A("global_load_dwordx2 v[24:25], v1, s[10:11]")
    A("s_load_dword s37, s[12:13], s35")
    if stamps: A("s_memrealtime s[62:63]")
    A("s_mov_b32 s24, s4"); A("s_mov_b32 s25, s5")
    for j in range(8):
        if j == 4:
            A("s_add_u32 m0, m0, 4096"); A("s_nop 0")
        A(f"buffer_load_dwordx4 v{12 + (j&3)}, s[24:27], s{52 + j//4} offen offset:{1024*(j&3)} nt lds")
    for base in (16, 20):
        A(f"s_mov_b32 s{base}, s6"); A(f"s_mov_b32 s{base+1}, s7")
        A(f"s_mov_b32 s{base+2}, {KBYTES}"); A(f"s_mov_b32 s{base+3}, 0x20000")
    A("v_lshl_add_u32 v8, v4, 11, v16")
    for j in range(1, 4):
        A(f"v_xor_b32 v{8+j}, {16*j}, v8")
        A(f"v_add_u32 v{8+j}, {(8192-1024)*j}, v{8+j}")
    A("v_lshlrev_b32 v21, 5, v0")
    A("s_lshl_b32 s36, s33, 8                 ; h*256")
    A(f"s_mov_b32 s59, {KBYTES}")
    A("s_mov_b32 s42, 0")
    A("s_mov_b32 s56, -1")
    A("s_mov_b32 s54, 128")
    A("s_mov_b32 s49, 0")
    A(f"v_mov_b32 v32, {NBUF}")
    A("s_waitcnt lgkmcnt(0)")
    A("s_cmp_gt_i32 s37, 0")
    A("s_cselect_b32 s37, s37, 2048")
    A("s_min_i32 s37, s37, 2048")
    A("v_sub_u32 v21, s37, v21")
    A("s_sub_u32 s48, s37, 1")
    A("s_lshr_b32 s48, s48, 5")
    A("v_med3_i32 v22, v21, 0, 16")
    A("v_subrev_u32 v21, 16, v21")
    A("v_med3_i32 v23, v21, 0, 16")
    A("s_and_b32 s41, s48, 3")
    A("s_add_u32 s41, s41, 1")
    A(f"s_min_u32 s50, s41, {pre}")
    A("s_mov_b32 s46, s41")
    A("s_mul_i32 s39, s37, 9")
    A("s_lshr_b32 s39, s39, 1")
    A("s_sub_i32 s39, s39, 1280")
    A(f"s_max_i32 s39, s39, {prior*256}")
    A("v_mov_b32 v33, s39")
    A("s_waitcnt vmcnt(8)")
    if stamps: A("s_memrealtime s[64:65]")
    A("v_lshlrev_b32 v2, 15, v24")
    A("v_lshlrev_b32 v3, 15, v25")
    A("v_lshl_add_u32 v4, v22, 11, v2")
    A("v_lshl_add_u32 v5, v23, 11, v3")
    A("v_add_u32 v2, s36, v2")
    A("v_min_u32 v4, s59, v4")
    A("v_add_u32 v3, s36, v3")
    A("v_min_u32 v5, s59, v5")
    A("ds_write_b32 v32, v33")
    Ns = list(range(nlo, nhi+1, nstep))
    assert n0 in Ns
    def version(NN, fall=False):
        q, p = (NN-1) // 8, (NN-1) % 8
        if valign and not fall:
            A(f".p2align {valign}")
            for _ in range(shift): A("s_nop 0")
        if first_align and fall: A(f".p2align {first_align}")
        A(f"L_ld{NN}:")
        A("v_readlane_b32 s52, v2, s48")
        A("v_readlane_b32 s18, v4, s48")
        A("v_readlane_b32 s53, v3, s48")
        A("v_readlane_b32 s22, v5, s48")
        A("s_mov_b32 m0, s49")
        A("s_sub_u32 s48, s48, 1")
        A("s_add_u32 s49, s49, 8192")
        A(f"s_sub_i32 s51, s42, {q}")
        A("s_add_u32 s42, s42, 1")
        for j in range(8):
            if j == 4: A("s_add_u32 m0, m0, 4096")
            if j == 6: A("ds_read_b32 v33, v32")
            if j == p: A("s_cmp_lt_i32 s51, s46")
            A(f"s_waitcnt vmcnt({NN-1})")
            if j == p:
                A(f"s_cbranch_scc1 L_ld{NN}_np")
                A("s_barrier")
                A("s_add_u32 s43, s43, s44")
                A(f"s_add_u32 s51, s51, {space}")
                A("s_max_i32 s46, s43, s51")
                A("s_cmp_eq_u32 s43, s45")
                A("s_cselect_b32 s44, s41, 4")
                A(f"L_ld{NN}_np:")
            srd = 16 if j < 4 else 20
            A(f"buffer_load_dwordx4 v{8 + (j&3)}, s[{srd}:{srd+3}], s{52 + j//4} offen offset:{1024*(j&3)} nt lds")
        A("s_sub_u32 s50, s50, 1")
        A("s_cmp_lg_u32 s50, 0")
        A(f"s_cbranch_scc1 L_ld{NN}")
        if not fall: A("s_branch L_next")
    version(n0, fall=True)
    A("s_cmp_ge_i32 s56, 0")
    A("s_cbranch_scc1 L_next")
    A("s_add_u32 s43, s48, 1")
    sort_pages(24, 25, 43, SBUF, 34, "o")
    A("v_lshlrev_b32 v1, 3, v0")
    A(f"v_add_u32 v1, {SBUF+256}, v1")
    A("ds_read_b64 v[2:3], v1")
    A("s_add_u32 s55, s48, s42")
    A("s_add_u32 s45, s55, 1                  ; tiles")
    A("s_mov_b32 s43, s41")
    A("s_cmp_eq_u32 s41, s45")
    A("s_cselect_b32 s44, 0, 4")
    A("s_cselect_b32 s58, 1, 0")
    A("s_lshl_b32 s47, s45, 1")
    A("s_mov_b32 s56, 0")
    A("s_waitcnt lgkmcnt(0)")
    A("v_lshlrev_b32 v2, 15, v2")
    A("v_lshlrev_b32 v3, 15, v3")
    A("v_lshl_add_u32 v4, v22, 11, v2")
    A("v_lshl_add_u32 v5, v23, 11, v3")
    A("v_add_u32 v2, s36, v2")
    A("v_min_u32 v4, s59, v4")
    A("v_add_u32 v3, s36, v3")
    A("v_min_u32 v5, s59, v5")
    A("s_sub_u32 s50, s41, s42")
    A("s_cmp_lg_u32 s50, 0")
    A(f"s_cbranch_scc1 L_ld{n0}")
    A("L_next:")
    A("s_waitcnt lgkmcnt(0)")
    A("v_readfirstlane_b32 s39, v33")
    A("s_add_u32 s56, s56, 1")
    A("s_mov_b32 s50, 4")
    A("s_cmp_ge_i32 s48, 0")
    A("s_cbranch_scc1 L_area")
    A("s_cmp_lt_i32 s55, 0")
    A("s_cbranch_scc1 L_drain")
    A("s_mov_b32 s16, s8"); A("s_mov_b32 s17, s9"); A("s_mov_b32 s20, s8"); A("s_mov_b32 s21, s9")
    A("s_mov_b32 s48, s55")
    A("s_mov_b32 s55, -1")
    A("s_mov_b32 s50, s41")
    A("s_add_u32 s56, s56, s58")
    A("L_area:")
    A("s_and_b32 s49, s56, 3")
    A("s_lshl_b32 s49, s49, 15")
    A("L_disp:")
    A("s_add_u32 s54, s54, s39")
    A("s_lshr_b32 s57, s54, 8")
    A(f"s_and_b32 s54, s54, {256*nstep-1}")
    def dispatch(lst):
        if len(lst) == 1:
            A(f"s_branch L_ld{lst[0]}")
            return
        mid = len(lst)//2
        lab = f"L_disp{lst[mid]}_{lst[-1]}"
        A(f"s_cmp_ge_u32 s57, {lst[mid]}")
        if len(lst) - mid == 1:
            A(f"s_cbranch_scc1 L_ld{lst[mid]}")
            dispatch(lst[:mid])
        else:
            A(f"s_cbranch_scc1 {lab}")
            dispatch(lst[:mid])
            A(f"{lab}:")
            dispatch(lst[mid:])
    dispatch(Ns)
    for NN in Ns:
        if NN != n0: version(NN)
    A("L_drain:")
    for c in range(6, 0, -1):
        A(f"L_drain{c}:")
        A("s_sub_i32 s51, s47, s43")
        A(f"s_cmp_lt_i32 s51, {c}")
        A(f"s_cbranch_scc1 L_drain{c}_n")
        A(f"s_waitcnt vmcnt({8*c})")
        A("s_barrier")
        A("s_add_u32 s43, s43, s44")
        A("s_cmp_eq_u32 s43, s45")
        A("s_cselect_b32 s44, s41, 4")
        A(f"s_branch L_drain{c}")
        A(f"L_drain{c}_n:")
    A("s_cmp_gt_u32 s47, 8")
    A("s_cbranch_scc1 L_last3")
    A("s_waitcnt vmcnt(0)")
    A("L_last3:")
    A("s_waitcnt vmcnt(8)")
    A("s_barrier")
    A("s_waitcnt vmcnt(0)")
    A("s_barrier")
    if stamps:
        A("s_branch L_stamp")
    A("s_endpgm")

    A("L_notloader:")
    A("s_cmp_lt_u32 s34, 5")
    A("s_cbranch_scc1 L_consumer")
    A("s_and_b32 s35, s33, 3")
    A("v_and_b32 v6, 31, v0")
    A("v_lshrrev_b32 v9, 5, v0")
    A("v_lshlrev_b32 v9, 4, v9")
    A("v_xor_b32 v9, v9, v6")
    A("v_lshlrev_b32 v12, 2, v6")
    A("v_lshlrev_b32 v13, 2, v9")
    A("v_add_u32 v15, s2, v6")
    A("v_and_b32 v15, 3, v15")
    A("v_cmp_eq_u32 vcc, 1, v15")
    A("v_mov_b32 v15, 0x100000")
    A("s_nop 0")
    A("v_cndmask_b32 v15, 0, v15, vcc")
    A("v_add_u32 v6, v6, v15")
    A("v_add_u32 v9, v9, v15")
    A("s_waitcnt lgkmcnt(0)")
    A("global_load_dword v7, v12, s[12:13]")
    A("global_load_dword v14, v13, s[12:13]")
    for base, p in ((16, 6),):
        A(f"s_mov_b32 s{base}, s{p}"); A(f"s_mov_b32 s{base+1}, s{p+1}")
        A(f"s_mov_b32 s{base+2}, {KBYTES}"); A(f"s_mov_b32 s{base+3}, 0x20000")
    A("v_lshrrev_b32 v8, 2, v0")
    A("v_lshlrev_b32 v8, 11, v8")
    A("v_and_b32 v10, 3, v0")
    A("v_lshl_add_u32 v8, v10, 6, v8          ; token*2048 + (l&3)*64")
    A("v_mov_b32 v19, 2048")
    A("v_mov_b32 v10, 0")
    A("s_getreg_b32 s48, hwreg(HW_REG_XCC_ID, 0, 3)")
    A(f"v_mov_b32 v32, {NBUF}")
    A("s_bitcmp1_b32 s48, 0")
    A(f"s_mov_b32 s49, {F(1.0+par)}")
    A(f"s_cselect_b32 s49, {F(1.0-par)}, s49")
    A("s_lshl_b32 s48, s48, 5")
    A("s_add_u32 s47, s48, s32")
    A("v_mov_b32 v17, s47")
    A("v_and_b32 v28, 7, v0")
    A("v_lshlrev_b32 v28, 2, v28")
    A("v_add_u32 v28, s48, v28")
    A("s_waitcnt vmcnt(0)")
    A("v_cmp_lt_i32 vcc, 0, v7")
    A("v_cmp_lt_i32 s[40:41], 0, v14")
    A("v_min_i32 v7, v7, v19")
    A("v_min_i32 v14, v14, v19")
    A("v_cndmask_b32 v7, v19, v7, vcc")
    A("v_cndmask_b32 v14, v19, v14, s[40:41]")
    A("v_lshl_add_u32 v11, v7, 5, v6")
    A("v_lshl_add_u32 v14, v14, 5, v9")
    A("v_add_u32_dpp v15, v7, v7 row_shr:1 row_mask:0xf bank_mask:0xf bound_ctrl:0")
    A("v_sub_u32 v12, v14, v11")
    for k in range(1, 16):
        A(f"v_sub_u32_dpp v{12 + (k&1)}, v14, v11 row_ror:{k} row_mask:0xf bank_mask:0xf")
        A(f"v_alignbit_b32 v10, v10, v{12 + ((k-1)&1)}, 31")
        if k in (2, 4, 6):
            A(f"v_add_u32_dpp v15, v15, v15 row_shr:{ {2:2,4:4,6:8}[k] } row_mask:0xf bank_mask:0xf bound_ctrl:0")
        if k == 8:
            A("v_add_u32_dpp v15, v15, v15 row_bcast:15 row_mask:0xa bank_mask:0xf")
    A("v_alignbit_b32 v10, v10, v13, 31")
    A("v_bcnt_u32_b32 v10, v10, 0")
    A("v_readlane_b32 s40, v15, 31")
    A("v_mov_b32 v12, v10")
    A("v_readlane_b32 s38, v7, s32")
    A("s_nop 0")
    A("v_permlane32_swap_b32 v10, v12")
    A("v_add_u32 v10, v10, v12                ; rank")
    A("v_cvt_f32_u32 v24, s40")
    A("v_readlane_b32 s41, v10, s32")
    A(f"v_mul_f32 v13, {F(pf_gain*pf_thr/1024)}, v24")
    A("v_cvt_f32_u32 v12, v7")
    A("v_rcp_f32 v24, v24")
    A("s_mul_i32 s36, s41, 86")
    A("s_lshr_b32 s36, s36, 8                 ; rank / 3")
    A("s_mul_i32 s44, s36, 3")
    A("s_sub_u32 s44, s41, s44                ; rank % 3")
    A("s_sub_u32 s41, 31, s36")
    A("s_cmp_eq_u32 s35, 1")
    A("s_cselect_b32 s36, 100, s44")
    A("v_cmp_eq_u32 vcc, s41, v10")
    A(f"v_mul_f32 v12, {F(pf_gain/32)}, v12")
    A("v_sub_f32 v12, v12, v13")
    A("v_cvt_i32_f32 v12, v12")
    A("v_lshrrev_b32 v13, 5, v7")
    A("v_min_i32 v12, v12, v13")
    A("s_ff1_i32_b32 s41, vcc_lo")
    A("s_and_b32 s41, s41, 31")
    A("v_readlane_b32 s45, v12, s41")
    A("v_readlane_b32 s55, v12, s32")
    A("v_readlane_b32 s56, v7, s41")
    A("s_lshl_b32 s43, s41, 9")
    A("v_add_u32 v1, s43, v1")
    A("global_load_dwordx2 v[2:3], v1, s[10:11]")
    A("v_cvt_f32_u32 v25, s38")
    A("s_add_u32 s37, s41, s2")
    A("s_and_b32 s37, s37, 7")
    A("s_lshl_b32 s37, s37, 8")
    A("s_add_u32 s36, s36, 1")
    A("s_sub_i32 s45, s45, s36")
    A("s_add_u32 s38, s38, 31")
    A("s_lshr_b32 s38, s38, 5                 ; tiles")
    A("s_add_u32 s42, s38, 3")
    A("s_lshr_b32 s58, s42, 2                 ; rounds")
    A("s_lshl_b32 s42, s58, 1")
    A("s_mov_b32 s59, s45")
    A("v_mul_f32 v25, v25, v24")
    A(f"v_mov_b32 v26, {F(bias*256)}")
    A(f"v_mul_f32 v25, {F(alpha*256*32)}, v25")
    A("v_add_f32 v26, v26, v25")
    A("v_mul_f32 v26, s49, v26")
    A("s_max_i32 s55, s55, 0")
    A("s_cmp_eq_u32 s35, 1")
    A("s_cselect_b32 s55, s55, 0")
    A("v_cvt_u32_f32 v30, v26")
    A("v_cvt_f32_u32 v12, s38")
    A("v_cvt_f32_u32 v16, s55")
    A(f"v_mov_b32 v18, {F(hitw - 1.0)}")
    A("v_fma_f32 v12, v16, v18, v12")
    A("v_add_f32 v12, v12, v12")
    A("v_rcp_f32 v12, v12")
    A(f"s_mul_i32 s46, s42, {256 - int(pub_start*256)}")
    A("s_lshr_b32 s46, s46, 8")
    A(f"s_mul_i32 s50, s42, {256 - int(fb_start*256)}")
    A("s_lshr_b32 s50, s50, 8")
    A("v_mov_b32 v19, -1")
    A("s_mov_b32 s51, 0")
    A("s_sub_u32 s42, s42, 2")
    A("s_sub_u32 s56, s56, 1")
    A("s_lshr_b32 s56, s56, 5")
    A("s_and_b32 s57, s56, 3")
    A(f"s_min_u32 s57, s57, {pre-1}")
    A("s_sub_u32 s56, s56, s57")
    A("s_barrier")
    A("ds_write_b32 v32, v30")
    A("s_cmp_lt_i32 s45, 0")
    A("s_cbranch_scc1 L_pf_nosort")
    A("s_waitcnt vmcnt(0)")
    sort_pages(2, 3, 56, SBUF+768, 34, "p")
    A("v_lshlrev_b32 v1, 3, v0")
    A(f"v_add_u32 v1, {SBUF+768+256}, v1")
    A("ds_read_b64 v[2:3], v1")
    A("L_pf_nosort:")
    A("s_barrier")
    A("s_waitcnt vmcnt(0) lgkmcnt(0)")
    A("v_lshlrev_b32 v2, 15, v2")
    A("v_lshlrev_b32 v3, 15, v3")
    A("v_add_u32 v2, s37, v2")
    A("v_add_u32 v3, s37, v3")
    A("L_pf_loop:")
    A("s_cmp_eq_u32 s51, 0")
    A("s_cbranch_scc1 L_pf_nofb")
    A("s_waitcnt vmcnt(0)")
    A("v_msad_u8 v33, v19, v30, 0")
    A("v_sad_u8 v30, v30, 0, 0")
    A("v_lshl_add_u32 v30, v33, 16, v30")
    A("s_nop 1")
    for sh in (1, 2, 4):
        A(f"v_add_u32_dpp v30, v30, v30 row_ror:{sh} row_mask:0xf bank_mask:0xf")
        if sh != 4: A("s_nop 1")
    A("v_lshrrev_b32 v33, 16, v30")
    A("v_and_b32 v30, 0xffff, v30")
    A("v_add_u32 v30, v30, v33")
    A("v_cvt_f32_u32 v30, v30")
    A("v_cvt_f32_u32 v33, v33")
    A("v_rcp_f32 v30, v30")
    A("s_mov_b32 s51, 0")
    A("v_mul_f32 v30, v30, v33")
    if mid:
        A("v_cmp_lt_f32 vcc, 0.5, v30")
        A("v_subrev_f32 v33, 0.5, v30")
        A("s_nop 0")
        A("v_cndmask_b32 v29, v30, v33, vcc")
    else:
        A("v_mov_b32 v29, v30")
    A(f"v_max_f32 v33, {F(fb_dmin)}, v29")
    if ramp:
        A(f"v_mul_f32 v29, {F(-ramp)}, v29")
        A(f"v_add_f32 v29, {F(1.0 + ramp*ramp0)}, v29")
    A("v_rcp_f32 v33, v33")
    A("v_sub_f32 v30, v31, v30")
    A(f"v_mul_f32 v30, {F(fb_g)}, v30")
    A("v_fma_f32 v30, v30, v33, 1.0")
    A(f"v_max_f32 v30, {F(fb_lo)}, v30")
    A(f"v_min_f32 v30, {F(fb_hi)}, v30")
    A("v_mul_f32 v30, v30, v26")
    if ramp: A("v_mul_f32 v30, v30, v29")
    if hb:
        A("s_cmp_eq_u32 s42, s58")
        A("s_cselect_b32 s47, s59, s45")
        A("s_cmp_ge_i32 s47, 6")
        A(f"s_cselect_b32 s47, {F(1.0+hb)}, 1.0")
        A("v_mul_f32 v30, s47, v30")
    A("v_cvt_u32_f32 v30, v30")
    A("ds_write_b32 v32, v30")
    A("L_pf_nofb:")
    A("s_cmp_lg_u32 s42, s58")
    A("s_cbranch_scc1 L_pf_same")
    A("s_mov_b32 s16, s8")
    A("s_mov_b32 s17, s9")
    A("s_mov_b32 s45, s59")
    A("L_pf_same:")
    A("s_max_i32 s47, s45, 0")
    A("s_sub_i32 s54, s45, 3")
    A("s_max_i32 s49, s54, 0")
    A("v_readlane_b32 s52, v2, s47")
    A("v_readlane_b32 s53, v3, s47")
    A("v_readlane_b32 s56, v2, s49")
    A("v_readlane_b32 s57, v3, s49")
    A("s_cmp_ge_u32 s42, s58")
    A("s_cselect_b32 s47, s58, 0")
    A("s_cselect_b32 s49, 0.5, 0")
    A("s_sub_u32 s47, s42, s47")
    A("s_lshl_b32 s47, s47, 2")
    A("v_cvt_f32_u32 v15, s47")
    A(f"v_subrev_f32 v14, {F(pub_off)}, v15")
    A("v_min_f32 v13, v15, v16")
    A("v_fma_f32 v15, v13, v18, v15")
    A("v_min_f32 v13, v14, v16")
    A("v_fma_f32 v14, v13, v18, v14")
    A("v_fma_f32 v14, v14, v12, s49")
    A(f"v_mov_b32 v13, {F(255.5)}")
    A(f"v_mul_f32 v14, {F(-255.0)}, v14")
    A("v_add_f32 v14, v14, v13")
    A("v_min_f32 v14, v14, v13")
    A("v_cvt_u32_f32 v14, v14")
    A("s_cmp_gt_u32 s42, s46")
    A("s_cbranch_scc1 L_pf_nopub")
    A("s_mov_b64 exec, 1")
    A("global_store_byte v17, v14, s[30:31]")
    A("s_mov_b64 exec, -1")
    A("s_cmp_gt_u32 s42, s50")
    A("s_cbranch_scc1 L_pf_nopub")
    A("s_waitcnt lgkmcnt(0)")
    A("global_load_dword v30, v28, s[30:31] nt")
    A("v_fma_f32 v31, v15, v12, s49")
    A("s_mov_b32 s51, 1")
    A("L_pf_nopub:")
    A("s_cmp_lt_i32 s45, 0")
    A("s_cbranch_scc1 L_pf_nov")
    A("buffer_load_dword v20, v8, s[16:19], s52 offen")
    A("buffer_load_dword v21, v8, s[16:19], s53 offen")
    A("s_sub_i32 s45, s45, 6")
    A("s_cmp_lt_i32 s54, 0")
    A("s_cbranch_scc1 L_pf_nov")
    A("s_waitcnt vmcnt(0)")
    A("buffer_load_dword v22, v8, s[16:19], s56 offen")
    A("buffer_load_dword v23, v8, s[16:19], s57 offen")
    A("L_pf_nov:")
    A("s_cmp_le_i32 s42, 1")
    A("s_cbranch_scc1 L_pf_exit")
    A("s_sub_u32 s42, s42, 1")
    A("s_barrier")
    A("s_branch L_pf_loop")
    A("L_pf_exit:")
    A("s_endpgm")

    P0, S0, O0, Q0, F0, B0, X0, KA, PST = 40, 48, 48, 64, 96, 64, 40, 16, 128
    VA0, VA1, vM, vL, vMC = 24, 25, 28, 29, 33
    vPW, vPR, vMW, vMR = 4, 5, 6, 7
    A("; ================================================================ consumers")
    A("L_consumer:")
    A("s_sub_u32 s34, s34, 1                  ; cw")
    A("v_and_b32 v1, 31, v0")
    A("v_lshrrev_b32 v2, 5, v0                ; hf")
    A("s_lshl_b32 s35, s32, 16")
    A("s_lshl_b32 s36, s33, 13")
    A("s_add_u32 s35, s35, s36")
    A("s_lshl_b32 s36, s32, 2")
    A("s_waitcnt lgkmcnt(0)")
    A("s_load_dword s37, s[12:13], s36")
    A("s_lshl_b32 s46, s34, 13                ; cw*8192")
    A("v_and_b32 v8, 3, v0")
    A("v_bfe_u32 v9, v0, 2, 2")
    A("v_lshl_add_u32 v10, v8, 2, v9")
    A("v_xor_b32 v10, v10, v2")
    A("v_lshlrev_b32 v10, 4, v10")
    A("v_lshl_add_u32 v10, v1, 8, v10")
    A(f"v_add_u32 v{KA}, s46, v10")
    A(f"v_add_u32 v{S0}, {QBUF}, v10")
    for kk in range(1, 8):
        A(f"v_xor_b32 v{S0+kk}, {32*kk}, v{S0}")
    for kk in range(1, 8):
        A(f"v_xor_b32 v{KA+kk}, {32*kk}, v{KA}")
    A("v_lshl_add_u32 v10, v2, 2, v9")
    A("v_lshlrev_b32 v10, 8, v10")
    A("v_xor_b32 v11, s34, v9")
    A("v_lshl_add_u32 v10, v11, 6, v10")
    A("v_bfe_u32 v11, v0, 4, 1")
    A("v_bfe_u32 v12, v0, 1, 1")
    A("v_lshl_add_u32 v11, v11, 1, v12")
    A("v_xor_b32 v11, v11, v2")
    A("v_lshl_add_u32 v10, v11, 4, v10")
    A("v_and_b32 v11, 1, v0")
    A(f"v_lshl_add_u32 v{VA0}, v11, 3, v10")
    A(f"v_xor_b32 v{VA1}, 32, v{VA0}")
    A("v_lshlrev_b32 v10, 4, v0")
    A(f"v_add_u32 v{vPR}, {PBUF}, v10")
    A("s_lshl_b32 s47, s34, 11")
    A(f"v_add_u32 v{vPW}, s47, v{vPR}")
    A("v_lshlrev_b32 v11, 5, v1")
    A(f"v_add_u32 v{vMR}, {MBUF}, v11")
    A("s_lshl_b32 s47, s34, 3")
    A(f"v_lshl_add_u32 v{vMW}, v2, 2, v{vMR}")
    A(f"v_add_u32 v{vMW}, s47, v{vMW}")
    A("v_lshlrev_b32 v8, 2, v1")
    A(f"v_add_u32 v8, {ABUF}, v8")
    A("v_add_u32 v9, 128, v8")
    for i in range(4):
        A(f"v_mov_b32 v{P0+i}, 0")
    A(f"v_mov_b32 v{vM}, {F(-1e30)}")
    A(f"v_mov_b32 v{vMC}, {F(-1e30)}")
    A(f"v_mov_b32 v{vL}, 0")
    A("v_mov_b32 v15, 0xff800000")
    A("s_lshl_b32 s47, s34, 6")
    A("s_add_u32 s47, s47, s35")
    A("v_lshrrev_b32 v36, 2, v0")
    A("v_and_b32 v37, 3, v0")
    A("v_lshlrev_b32 v3, 8, v36")
    A("v_lshl_add_u32 v3, v37, 4, v3")
    A("v_add_u32 v3, s47, v3")
    A("s_lshl_b32 s47, s34, 11")
    A(f"s_add_u32 s47, s47, {QBUF}")
    A("v_bfe_u32 v38, v0, 3, 2")
    A("v_xor_b32 v37, v37, v38")
    A("v_lshlrev_b32 v37, 4, v37")
    A("v_lshl_add_u32 v37, v36, 6, v37")
    A("v_add_u32 v13, s47, v37")
    A("v_bfe_u32 v38, v0, 1, 2")
    A("v_lshlrev_b32 v38, 4, v38")
    A("v_lshl_add_u32 v38, v1, 6, v38")
    A("v_lshl_add_u32 v38, v2, 3, v38")
    A("v_add_u32 v36, s47, v38")
    A("v_xor_b32 v37, 16, v36")
    A("v_xor_b32 v38, 32, v36")
    A("v_xor_b32 v12, 48, v36")
    A("s_waitcnt lgkmcnt(0)")
    A(f"s_mov_b32 s48, {F(128**-0.5*math.log2(math.e))}             ; D^-0.5 * log2(e)")
    A("s_cmp_gt_i32 s37, 0")
    A("s_cselect_b32 s48, s48, 0")
    A("s_cselect_b32 s37, s37, 2048")
    A("s_min_i32 s37, s37, 2048")
    A("s_add_u32 s38, s37, 31")
    A("s_lshr_b32 s38, s38, 5                 ; tiles")
    A("s_sub_u32 s40, s38, 1")
    A("s_and_b32 s41, s40, 3")
    A("s_add_u32 s41, s41, 1                  ; m")
    A("s_add_u32 s42, s38, 3")
    A("s_lshr_b32 s42, s42, 2                 ; rounds")
    A("s_lshl_b32 s40, s40, 5")
    A("s_sub_u32 s40, s37, s40")
    A("s_cmp_eq_u32 s34, 0")
    A("s_cselect_b32 s40, s40, 64")
    A("s_cmp_lt_u32 s34, s41")
    A("s_cselect_b32 s40, s40, 0")
    A("v_lshlrev_b32 v14, 2, v2")
    A("v_sub_u32 v14, s40, v14")
    A("s_cbranch_scc1 L_active")
    A("s_cmp_gt_u32 s42, 4")
    A("s_cbranch_scc1 L_active")
    A("s_max_u32 s47, s42, 2")
    A("s_and_b32 s47, s47, 3")
    A("s_lshl_b32 s47, s47, 15")
    A("s_add_u32 s47, s47, s46")
    A("v_add_u32 v11, s47, v10")
    for i in range(8):
        A(f"ds_write_b128 v11, v[{P0}:{P0+3}] offset:{1024*i}")
    A("L_active:")
    A("s_mov_b32 s43, 0                       ; round")
    A("s_mov_b32 s44, 0x8000")
    A("s_mov_b32 s49, 0")
    A("s_waitcnt vmcnt(0) lgkmcnt(0)")
    A("s_barrier")
    if stamps:
        A("s_memrealtime s[62:63]")
        A("s_waitcnt lgkmcnt(0)")
    for kk in range(8):
        A(f"ds_read_b128 v[{Q0+4*kk}:{Q0+4*kk+3}], v{S0+kk}")
    def rdP(i): return f"ds_read_b128 v[{B0+4*i}:{B0+4*i+3}], v{vPR} offset:{2048*(i>>1) + 1024*(i&1)}"
    def rdV(i):
        r = F0 + 4*i
        return [f"ds_read_b64_tr_b16 v[{r}:{r+1}], v26 offset:{8192*(i>>1) + 4096*(i&1)}",
                f"ds_read_b64_tr_b16 v[{r+2}:{r+3}], v27 offset:{8192*(i>>1) + 4096*(i&1) + 2048}"]
    def rdX(): return [f"ds_read_b128 v[{X0}:{X0+3}], v{vMR}", f"ds_read_b128 v[{X0+4}:{X0+7}], v{vMR} offset:16"]
    def mm(i):
        r = F0 + 4*i
        return f"v_mfma_f32_32x32x16_bf16 v[{O0}:{O0+15}], v[{r}:{r+3}], v[{B0+4*i}:{B0+4*i+3}], v[{O0}:{O0+15}]"
    def vaddr():
        A("s_and_b32 s47, s45, 3")
        A("s_lshl_b32 s47, s47, 15")
        A("s_add_u32 s45, s45, 1")
        A(f"v_add_u32 v26, s47, v{VA0}")
        A(f"v_add_u32 v27, s47, v{VA1}")
    def fetchP():
        A("s_set_gpr_idx_on s50, gpr_idx(SRC0)")
        A("s_nop 0")
        for i in range(8): A(f"v_mov_b32 v{P0+i}, v{PST+i}")
        A("s_set_gpr_idx_off")
        A("s_add_u32 s50, s50, 8")
    def putP():
        return [f"ds_write_b128 v{vPW}, v[{P0}:{P0+3}]", f"ds_write_b128 v{vPW}, v[{P0+4}:{P0+7}] offset:1024"]
    A("s_mov_b32 s50, 0")
    A("L_K:")
    for x in rdX(): A(x)
    for kk in range(8):
        A(f"ds_read_b128 v[{F0+4*kk}:{F0+4*kk+3}], v{KA+kk}")
    A("s_cmp_eq_u32 s43, 0")
    A("s_cbranch_scc1 L_X")
    A(f"v_xor_b32 v{vMR}, 0x400, v{vMR}")
    A("s_waitcnt lgkmcnt(8)")
    A(f"v_max3_f32 v30, v{X0}, v{X0+1}, v{X0+2}")
    A(f"v_max3_f32 v31, v{X0+3}, v{X0+4}, v{X0+5}")
    A(f"v_max3_f32 v30, v30, v{X0+6}, v{X0+7}")
    A(f"v_max3_f32 v{vM}, v30, v31, v{vM}")
    A(f"v_mul_f32 v32, s48, v{vM}")
    A(f"v_sub_f32 v31, v{vMC}, v32")
    A(f"v_mov_b32 v{vMC}, v32")
    A("v_exp_f32 v34, v31")
    for v in range(16):
        A(f"v_fma_f32 v{S0+v}, v{S0+v}, s48, -v32")
    A("ds_write_b32 v8, v34")
    A(f"v_mul_f32 v{vL}, v{vL}, v34")
    for v in range(16):
        A(f"v_exp_f32 v{S0+v}, v{S0+v}")
    A("v_add_u32 v8, 128, v8")
    for i in range(8):
        A(f"v_cvt_pk_bf16_f32 v{P0+i}, v{S0+2*i}, v{S0+2*i+1}")
    A(f"v_add_f32 v30, v{S0}, v{S0+1}")
    A(f"v_add_f32 v31, v{S0+2}, v{S0+3}")
    for v in range(4, 16, 2):
        A(f"v_add_f32 v30, v30, v{S0+v}")
        A(f"v_add_f32 v31, v31, v{S0+v+1}")
    A("v_add_f32 v30, v30, v31")
    A(f"v_add_f32 v{vL}, v{vL}, v30")
    A("s_set_gpr_idx_on s49, gpr_idx(DST)")
    A("s_nop 0")
    for i in range(8): A(f"v_mov_b32 v{PST+i}, v{P0+i}")
    A("s_set_gpr_idx_off")
    A("s_add_u32 s49, s49, 8")
    A("s_cmp_eq_u32 s43, s42")
    A("s_cbranch_scc1 L_V0")
    A("L_X:")
    A("s_waitcnt lgkmcnt(0)")
    for kk in range(8):
        c = "0" if kk == 0 else f"v[{S0}:{S0+15}]"
        A(f"v_mfma_f32_32x32x16_bf16 v[{S0}:{S0+15}], v[{F0+4*kk}:{F0+4*kk+3}], v[{Q0+4*kk}:{Q0+4*kk+3}], {c}")
    for i in range(8): A(f"v_xor_b32 v{KA+i}, s44, v{KA+i}")
    A("s_xor_b32 s44, s44, 0x10000")
    A("s_add_u32 s43, s43, 1")
    A("s_cmp_lg_u32 s43, 1")
    A("s_cbranch_scc1 L_nomask")
    A("s_nop 0")
    for v in range(16):
        A(f"v_cmp_lt_i32 vcc, {8*(v>>2)+(v&3)}, v14")
        A("s_nop 1")
        A(f"v_cndmask_b32 v{S0+v}, v15, v{S0+v}, vcc")
    A("s_branch L_max")
    A("L_nomask:")
    A("s_cmp_lg_u32 s43, s42")
    A("s_cbranch_scc1 L_max")
    fetchP()
    for x in putP(): A(x)
    A(f"v_xor_b32 v{vPW}, 0x2000, v{vPW}")
    A("L_max:")
    A(f"v_max3_f32 v30, v{S0}, v{S0+1}, v{S0+2}")
    A(f"v_max3_f32 v31, v{S0+3}, v{S0+4}, v{S0+5}")
    A(f"v_max3_f32 v30, v30, v{S0+6}, v{S0+7}")
    A(f"v_max3_f32 v31, v31, v{S0+8}, v{S0+9}")
    A(f"v_max3_f32 v30, v30, v{S0+10}, v{S0+11}")
    A(f"v_max3_f32 v31, v31, v{S0+12}, v{S0+13}")
    A(f"v_max3_f32 v30, v30, v{S0+14}, v{S0+15}")
    A("v_max_f32 v30, v30, v31")
    A(f"ds_write_b32 v{vMW}, v30")
    A(f"v_xor_b32 v{vMW}, 0x400, v{vMW}")
    A("s_waitcnt lgkmcnt(0)")
    A("s_barrier")
    A("s_branch L_K")
    A("L_V0:")
    A(f"v_or_b32 v{vMW}, 0x400, v{vMW}")
    A(f"v_or_b32 v{vMR}, 0x400, v{vMR}")
    A(f"ds_write_b32 v{vMW}, v{vL} offset:1024")
    A(f"v_add_u32 v{vMR}, 1024, v{vMR}")
    for i in range(16):
        A(f"v_mov_b32 v{O0+i}, 0")
    A("s_max_u32 s45, s42, 2")
    vaddr()
    A("s_sub_u32 s42, s42, 1")
    A("s_cmp_lg_u32 s42, 0")
    A("s_waitcnt lgkmcnt(0)")
    A("s_cbranch_scc1 L_V")
    for x in putP(): A(x)
    A("s_waitcnt lgkmcnt(0)")
    A("s_barrier")
    A("s_branch L_last")
    A("L_V:")
    st = dict(n=0, done={})
    def emit_lds(x, tag=None):
        A(x); st["n"] += 1
        if tag is not None: st["done"][tag] = st["n"]
    AH = 4
    for i in range(AH):
        emit_lds(rdP(i)); v = rdV(i); emit_lds(v[0]); emit_lds(v[1], i)
    fetchP()
    for i in range(8):
        A(f"s_waitcnt lgkmcnt({st['n'] - st['done'][i]})")
        A(mm(i))
        if i + AH < 8:
            emit_lds(rdP(i+AH)); v = rdV(i+AH); emit_lds(v[0]); emit_lds(v[1], i+AH)
        if i == 4:
            emit_lds("ds_read_b32 v34, v9")
            for x in putP(): emit_lds(x)
    A(f"v_xor_b32 v{vPR}, 0x2000, v{vPR}")
    A(f"v_xor_b32 v{vPW}, 0x2000, v{vPW}")
    A("v_add_u32 v9, 128, v9")
    vaddr()
    A("s_sub_u32 s42, s42, 1")
    A("s_cmp_lg_u32 s42, 0")
    A("s_waitcnt lgkmcnt(0)")
    A("s_nop 0")
    for i in range(0, 16, 2):
        A(f"v_pk_mul_f32 v[{O0+i}:{O0+i+1}], v[{O0+i}:{O0+i+1}], v[34:35] op_sel_hi:[1,0]")
    A("s_barrier")
    A("s_cbranch_scc1 L_V")
    A("L_last:")
    NF = 6
    st["n"] = 0; st["done"] = {}
    for i in range(AH):
        emit_lds(rdP(i)); v = rdV(i); emit_lds(v[0]); emit_lds(v[1], i)
    extra = False
    for i in range(NF):
        A(f"s_waitcnt lgkmcnt({st['n'] - st['done'][i]})")
        A(mm(i))
        if i + AH < NF:
            emit_lds(rdP(i+AH)); v = rdV(i+AH); emit_lds(v[0]); emit_lds(v[1], i+AH)
        elif not extra:
            for k in range(NF, 8): emit_lds(rdP(k))
            for x in rdX(): emit_lds(x)
            extra = True
    A("s_waitcnt lgkmcnt(0)")
    A(f"v_add_f32 v30, v{X0}, v{X0+1}")
    A(f"v_add_f32 v31, v{X0+2}, v{X0+3}")
    A(f"v_add_f32 v32, v{X0+4}, v{X0+5}")
    A(f"v_add_f32 v33, v{X0+6}, v{X0+7}")
    A("v_add_f32 v30, v30, v31")
    A("v_add_f32 v32, v32, v33")
    A("v_add_f32 v30, v30, v32")
    A("v_rcp_f32 v34, v30")
    A("v_add_u32 v31, 4096, v3")
    A("s_barrier")
    for k in range(NF, 8):
        for x in rdV(k): A(x)
    for k in range(NF, 8):
        A(f"s_waitcnt lgkmcnt({2*(7-k)})")
        A(mm(k))
    A("s_nop 11")
    if stamps:
        A("s_memrealtime s[64:65]")
    for i in range(4):
        for k in (0, 2):
            r = O0 + 4*i + k
            A(f"v_pk_mul_f32 v[{r}:{r+1}], v[{r}:{r+1}], v[34:35] op_sel_hi:[1,0]")
        A(f"v_cvt_pk_bf16_f32 v{P0+2*i}, v{O0+4*i}, v{O0+4*i+1}")
        A(f"v_cvt_pk_bf16_f32 v{P0+2*i+1}, v{O0+4*i+2}, v{O0+4*i+3}")
        A(f"ds_write_b64 v{(36,37,38,12)[i]}, v[{P0+2*i}:{P0+2*i+1}]")
    A(f"ds_read_b128 v[{F0}:{F0+3}], v13")
    A(f"ds_read_b128 v[{F0+4}:{F0+7}], v13 offset:1024")
    A("s_waitcnt lgkmcnt(1)")
    A(f"global_store_dwordx4 v3, v[{F0}:{F0+3}], s[14:15]")
    A("s_waitcnt lgkmcnt(0)")
    A(f"global_store_dwordx4 v31, v[{F0+4}:{F0+7}], s[14:15]")
    if stamps:
        A("s_add_u32 s34, s34, 1")
        A("s_waitcnt vmcnt(0)")
        A("L_stamp:")
        A("s_memrealtime s[66:67]")
        A("s_mul_i32 s35, s2, 5"); A("s_add_u32 s35, s35, s34"); A("s_lshl_b32 s35, s35, 5")
        A("s_waitcnt lgkmcnt(0)")
        A("v_mov_b32 v12, s60"); A("v_mov_b32 v13, s61"); A("v_mov_b32 v14, s66"); A("v_mov_b32 v15, s67")
        A("v_mov_b32 v20, s62"); A("v_mov_b32 v21, s63"); A("v_mov_b32 v22, s64"); A("v_mov_b32 v23, s65")
        A("v_mov_b32 v16, s35")
        A("v_cmp_eq_u32 vcc, 0, v0")
        A("s_and_saveexec_b64 s[46:47], vcc")
        A("global_store_dwordx4 v16, v[12:15], s[68:69]")
        A("global_store_dwordx4 v16, v[20:23], s[68:69] offset:16")
        A("s_waitcnt vmcnt(0)")
    A("L_end:")
    A("s_endpgm")
    A('.section .rodata,"a"')
    A(".p2align 6")
    A(f".amdhsa_kernel {NAME}_kernel")
    A("  .amdhsa_next_free_vgpr 256")
    A("  .amdhsa_next_free_sgpr 72")
    A("  .amdhsa_accum_offset 256")
    A("  .amdhsa_group_segment_fixed_size 0")
    A("  .amdhsa_kernarg_size 64")
    A("  .amdhsa_user_sgpr_count 2")
    A("  .amdhsa_user_sgpr_kernarg_segment_ptr 1")
    A("  .amdhsa_system_sgpr_workgroup_id_x 1")
    A(".end_amdhsa_kernel")
    return "\n".join(o) + "\n"

if __name__ == "__main__":
    out = sys.argv[1]
    kw = {}
    for a in sys.argv[2:]:
        k, v = a.split("=", 1)
        try: v = json.loads(v)
        except Exception: pass
        kw[k] = v
    open(out, "w").write(gen(**kw))
```

```python
import sys, struct, math, json
NAME = "standalone__paged_block_table_kv_pagedattention__sampling"
KBYTES = 4100*32768
def f2u(x): return struct.unpack("<I", struct.pack("<f", x))[0]
def F(x): return hex(f2u(x))
HEADER = open("cdna_kernels/%s.s.ref" % NAME).read().split("; Override")[0]

PBUF = 131072
MBUF = PBUF + 16384
LBUF = MBUF + 2048
QBUF = LBUF + 1024
NBUF = QBUF + 8192
SBUF = NBUF + 256
ABUF = SBUF + 1536
LDS_TOTAL = ABUF + 2048

DOC = """; Design
;   The aux wave and d_debug only influence speed, never the result."""

def gen(nlo=8, nhi=34, nstep=2, n0=32, alpha=22.0, bias=-1.3, par=0.01, prior=20,
        pf_thr=0.99, pf_gain=2.2, hitw=0.6, space=3,
        fb_g=1.3, fb_dmin=0.15, fb_lo=0.8, fb_hi=1.25, fb_start=0.15, pub_start=0.08, pub_off=2.0,
        egap=8, stamps=False, valign=6, first_align=0, shift=0, bshift=6, pre=3, ramp=0.4, ramp0=0.3, mid=1, hb=0.03, k7=20.0, ka=7.0, x7=1.08, split=1):
    o = []
    A = o.append
    def sort_pages(va, vb, sT, base, t, lab):
        c0, c1, p0, p1, x, y, z, one = range(t, t+8)
        A(f"v_lshlrev_b32 v{x}, 2, v0")
        A(f"v_mov_b32 v{y}, 0")
        A(f"v_add_u32 v{x}, {base}, v{x}")
        A(f"v_lshrrev_b32 v{c0}, {bshift}, v{va}")
        A(f"ds_write_b32 v{x}, v{y}")
        A(f"v_lshrrev_b32 v{c1}, {bshift}, v{vb}")
        A(f"v_min_u32 v{c0}, 63, v{c0}")
        A(f"v_min_u32 v{c1}, 63, v{c1}")
        A(f"v_cmp_gt_i32 vcc, s{sT}, v0")
        A(f"v_lshlrev_b32 v{c0}, 2, v{c0}")
        A(f"v_lshlrev_b32 v{c1}, 2, v{c1}")
        A(f"v_cndmask_b32 v{one}, 0, 1, vcc")
        A(f"v_add_u32 v{y}, {base}, v{c0}")
        A(f"v_add_u32 v{z}, {base}, v{c1}")
        A(f"ds_add_rtn_u32 v{p0}, v{y}, v{one}")
        A(f"ds_add_rtn_u32 v{p1}, v{z}, v{one}")
        A(f"ds_read_b32 v{y}, v{x}")
        A("s_waitcnt lgkmcnt(0)")
        A("s_nop 0")
        A(f"v_add_u32_dpp v{z}, v{y}, v{y} row_shr:1 row_mask:0xf bank_mask:0xf bound_ctrl:0")
        for sh in (2, 4, 8):
            A("s_nop 1")
            A(f"v_add_u32_dpp v{z}, v{z}, v{z} row_shr:{sh} row_mask:0xf bank_mask:0xf bound_ctrl:0")
        A("s_nop 1")
        A(f"v_add_u32_dpp v{z}, v{z}, v{z} row_bcast:15 row_mask:0xa bank_mask:0xf")
        A("s_nop 1")
        A(f"v_add_u32_dpp v{z}, v{z}, v{z} row_bcast:31 row_mask:0xc bank_mask:0xf")
        A(f"v_sub_u32 v{z}, v{z}, v{y}")
        A(f"ds_bpermute_b32 v{c0}, v{c0}, v{z}")
        A(f"ds_bpermute_b32 v{c1}, v{c1}, v{z}")
        A(f"v_lshlrev_b32 v{x}, 1, v0")
        A(f"v_add_u32 v{y}, 1, v{x}")
        A("s_waitcnt lgkmcnt(0)")
        A(f"v_add_u32 v{c0}, v{c0}, v{p0}")
        A(f"v_add_u32 v{c1}, v{c1}, v{p1}")
        A(f"v_cndmask_b32 v{c0}, v{x}, v{c0}, vcc")
        A(f"v_cndmask_b32 v{c1}, v{y}, v{c1}, vcc")
        A(f"v_lshlrev_b32 v{c0}, 2, v{c0}")
        A(f"v_lshlrev_b32 v{c1}, 2, v{c1}")
        A(f"v_add_u32 v{c0}, {base+256}, v{c0}")
        A(f"v_add_u32 v{c1}, {base+256}, v{c1}")
        A(f"ds_write_b32 v{c0}, v{va}")
        A(f"ds_write_b32 v{c1}, v{vb}")
    A(HEADER.rstrip())
    A(f"; @launch grid=(256,1,1) block=(384,1,1) lds={LDS_TOTAL}")
    A(DOC)
    A('.amdgcn_target "amdgcn-amd-amdhsa--gfx950"')
    A(".text")
    A(f".globl {NAME}_kernel")
    A(".p2align 8")
    A(f".type {NAME}_kernel,@function")
    A(f"{NAME}_kernel:")
    A("s_load_dwordx8 s[4:11], s[0:1], 0")
    A("s_load_dwordx4 s[12:15], s[0:1], 32")
    A("s_load_dwordx2 s[30:31], s[0:1], 48    ; debug")
    A("s_cmp_ge_u32 s2, 256")
    A("s_cbranch_scc1 L_end")
    if stamps:
        A("s_memrealtime s[60:61]")
        A("s_load_dwordx2 s[68:69], s[0:1], 56")
    A("s_getpc_b64 s[28:29]")
    A("L_pc0:")
    A("v_subrev_u32 v2, 64, v0")
    A("v_lshlrev_b32 v2, 7, v2")
    A("v_cmp_gt_u32 vcc, L_end-L_pc0, v2")
    A("s_and_saveexec_b64 s[36:37], vcc")
    A("s_cbranch_execz L_nocpf")
    A("global_load_dword v39, v2, s[28:29]")
    A("L_nocpf:")
    A("s_mov_b64 exec, -1")
    A("s_lshr_b32 s32, s2, 3                  ; b")
    A("s_add_u32 s33, s2, s32")
    A("s_and_b32 s33, s33, 7                  ; h = (id + b) & 7")
    A("v_lshrrev_b32 v1, 6, v0")
    A("v_and_b32 v0, 63, v0                   ; lane")
    A("v_readfirstlane_b32 s34, v1            ; wave")
    A("s_lshl_b32 s35, s32, 9")
    A("v_lshlrev_b32 v1, 3, v0")
    A("s_cmp_lg_u32 s34, 0")
    A("s_cbranch_scc1 L_notloader")

    A("; ================================================================ loader")
    A("s_setprio 3")
    A("v_add_u32 v1, s35, v1")
    A("s_lshl_b32 s35, s32, 2")
    A("v_lshrrev_b32 v4, 4, v0")
    A("v_and_b32 v5, 15, v0")
    A("v_lshlrev_b32 v16, 2, v4")
    A("v_xor_b32 v16, v5, v16")
    A("v_lshlrev_b32 v16, 4, v16")
    A("v_lshl_add_u32 v12, v4, 8, v16")
    for j in range(1, 4):
        A(f"v_xor_b32 v{12+j}, {16*j}, v12")
    A("s_lshl_b32 s52, s32, 3")
    A("s_add_u32 s52, s52, s33")
    A("s_lshl_b32 s52, s52, 13")
    A("s_add_u32 s53, s52, 4096")
    A(f"s_mov_b32 s26, {32*32*8*128*2}")
    A("s_mov_b32 s27, 0x20000")
    A(f"s_mov_b32 m0, {QBUF}")
    A("s_waitcnt lgkmcnt(0)")
    A("global_load_dwordx2 v[24:25], v1, s[10:11]")
    A("s_load_dword s37, s[12:13], s35")
    if stamps: A("s_memrealtime s[62:63]")
    A("s_mov_b32 s24, s4"); A("s_mov_b32 s25, s5")
    for j in range(8):
        if j == 4:
            A("s_add_u32 m0, m0, 4096"); A("s_nop 0")
        A(f"buffer_load_dwordx4 v{12 + (j&3)}, s[24:27], s{52 + j//4} offen offset:{1024*(j&3)} nt lds")
    for base in (16, 20):
        A(f"s_mov_b32 s{base}, s6"); A(f"s_mov_b32 s{base+1}, s7")
        A(f"s_mov_b32 s{base+2}, {KBYTES}"); A(f"s_mov_b32 s{base+3}, 0x20000")
    A("v_lshl_add_u32 v8, v4, 11, v16")
    for j in range(1, 4):
        A(f"v_xor_b32 v{8+j}, {16*j}, v8")
        A(f"v_add_u32 v{8+j}, {(8192-1024)*j}, v{8+j}")
    A("v_lshlrev_b32 v21, 5, v0")
    A("s_lshl_b32 s36, s33, 8                 ; h*256")
    A(f"s_mov_b32 s59, {KBYTES}")
    A("s_mov_b32 s42, 0")
    A("s_mov_b32 s56, -1")
    A("s_mov_b32 s54, 128")
    A("s_mov_b32 s49, 0")
    A(f"v_mov_b32 v32, {NBUF}")
    A("s_waitcnt lgkmcnt(0)")
    A("s_cmp_gt_i32 s37, 0")
    A("s_cselect_b32 s37, s37, 2048")
    A("s_min_i32 s37, s37, 2048")
    A("v_sub_u32 v21, s37, v21")
    A("s_sub_u32 s48, s37, 1")
    A("s_lshr_b32 s48, s48, 5")
    A("v_med3_i32 v22, v21, 0, 16")
    A("v_subrev_u32 v21, 16, v21")
    A("v_med3_i32 v23, v21, 0, 16")
    A("s_and_b32 s41, s48, 3")
    A("s_add_u32 s41, s41, 1")
    A(f"s_min_u32 s50, s41, {pre}")
    A("s_mov_b32 s46, s41")
    A("s_mul_i32 s39, s37, 9")
    A("s_lshr_b32 s39, s39, 1")
    A("s_sub_i32 s39, s39, 1280")
    A(f"s_max_i32 s39, s39, {prior*256}")
    A("v_mov_b32 v33, s39")
    A("s_waitcnt vmcnt(8)")
    if stamps: A("s_memrealtime s[64:65]")
    A("v_lshlrev_b32 v2, 15, v24")
    A("v_lshlrev_b32 v3, 15, v25")
    A("v_lshl_add_u32 v4, v22, 11, v2")
    A("v_lshl_add_u32 v5, v23, 11, v3")
    A("v_add_u32 v2, s36, v2")
    A("v_min_u32 v4, s59, v4")
    A("v_add_u32 v3, s36, v3")
    A("v_min_u32 v5, s59, v5")
    A("ds_write_b32 v32, v33")
    Ns = list(range(nlo, nhi+1, nstep))
    assert n0 in Ns
    def version(NN, fall=False):
        q, p = (NN-1) // 8, (NN-1) % 8
        if valign and not fall:
            A(f".p2align {valign}")
            for _ in range(shift): A("s_nop 0")
        if first_align and fall: A(f".p2align {first_align}")
        A(f"L_ld{NN}:")
        A("v_readlane_b32 s52, v2, s48")
        A("v_readlane_b32 s18, v4, s48")
        A("v_readlane_b32 s53, v3, s48")
        A("v_readlane_b32 s22, v5, s48")
        A("s_mov_b32 m0, s49")
        A("s_sub_u32 s48, s48, 1")
        A("s_add_u32 s49, s49, 8192")
        A(f"s_sub_i32 s51, s42, {q}")
        A("s_add_u32 s42, s42, 1")
        for j in range(8):
            if j == 4: A("s_add_u32 m0, m0, 4096")
            if j == 6: A("ds_read_b32 v33, v32")
            if j == p: A("s_cmp_lt_i32 s51, s46")
            A(f"s_waitcnt vmcnt({NN-1})")
            if j == p:
                A(f"s_cbranch_scc1 L_ld{NN}_np")
                A("s_barrier")
                A("s_add_u32 s43, s43, s44")
                A(f"s_add_u32 s51, s51, {space}")
                A("s_max_i32 s46, s43, s51")
                A("s_cmp_eq_u32 s43, s45")
                A("s_cselect_b32 s44, s41, 4")
                A(f"L_ld{NN}_np:")
            srd = 16 if j < 4 else 20
            A(f"buffer_load_dwordx4 v{8 + (j&3)}, s[{srd}:{srd+3}], s{52 + j//4} offen offset:{1024*(j&3)} nt lds")
        A("s_sub_u32 s50, s50, 1")
        A("s_cmp_lg_u32 s50, 0")
        A(f"s_cbranch_scc1 L_ld{NN}")
        if not fall: A("s_branch L_next")
    version(n0, fall=True)
    A("s_cmp_ge_i32 s56, 0")
    A("s_cbranch_scc1 L_next")
    A("s_add_u32 s43, s48, 1")
    sort_pages(24, 25, 43, SBUF, 34, "o")
    A("v_lshlrev_b32 v1, 3, v0")
    A(f"v_add_u32 v1, {SBUF+256}, v1")
    A("ds_read_b64 v[2:3], v1")
    A("s_add_u32 s55, s48, s42")
    A("s_add_u32 s45, s55, 1                  ; tiles")
    A("s_mov_b32 s43, s41")
    A("s_cmp_eq_u32 s41, s45")
    A("s_cselect_b32 s44, 0, 4")
    A("s_cselect_b32 s58, 1, 0")
    A("s_lshl_b32 s47, s45, 1")
    A("s_mov_b32 s56, 0")
    A("s_waitcnt lgkmcnt(0)")
    A("v_lshlrev_b32 v2, 15, v2")
    A("v_lshlrev_b32 v3, 15, v3")
    A("v_lshl_add_u32 v4, v22, 11, v2")
    A("v_lshl_add_u32 v5, v23, 11, v3")
    A("v_add_u32 v2, s36, v2")
    A("v_min_u32 v4, s59, v4")
    A("v_add_u32 v3, s36, v3")
    A("v_min_u32 v5, s59, v5")
    A("s_sub_u32 s50, s41, s42")
    A("s_cmp_lg_u32 s50, 0")
    A(f"s_cbranch_scc1 L_ld{n0}")
    A("L_next:")
    A("s_waitcnt lgkmcnt(0)")
    A("v_readfirstlane_b32 s39, v33")
    A("s_add_u32 s56, s56, 1")
    A("s_mov_b32 s50, 4")
    A("s_cmp_ge_i32 s48, 0")
    A("s_cbranch_scc1 L_area")
    A("s_cmp_lt_i32 s55, 0")
    A("s_cbranch_scc1 L_drain")
    A("s_mov_b32 s16, s8"); A("s_mov_b32 s17, s9"); A("s_mov_b32 s20, s8"); A("s_mov_b32 s21, s9")
    A("s_mov_b32 s48, s55")
    A("s_mov_b32 s55, -1")
    A("s_mov_b32 s50, s41")
    A("s_add_u32 s56, s56, s58")
    A("L_area:")
    A("s_and_b32 s49, s56, 3")
    A("s_lshl_b32 s49, s49, 15")
    A("L_disp:")
    A("s_add_u32 s54, s54, s39")
    A("s_lshr_b32 s57, s54, 8")
    A(f"s_and_b32 s54, s54, {256*nstep-1}")
    def dispatch(lst):
        if len(lst) == 1:
            A(f"s_branch L_ld{lst[0]}")
            return
        mid = len(lst)//2
        lab = f"L_disp{lst[mid]}_{lst[-1]}"
        A(f"s_cmp_ge_u32 s57, {lst[mid]}")
        if len(lst) - mid == 1:
            A(f"s_cbranch_scc1 L_ld{lst[mid]}")
            dispatch(lst[:mid])
        else:
            A(f"s_cbranch_scc1 {lab}")
            dispatch(lst[:mid])
            A(f"{lab}:")
            dispatch(lst[mid:])
    dispatch(Ns)
    for NN in Ns:
        if NN != n0: version(NN)
    A("L_drain:")
    for c in range(6, 0, -1):
        A(f"L_drain{c}:")
        A("s_sub_i32 s51, s47, s43")
        A(f"s_cmp_lt_i32 s51, {c}")
        A(f"s_cbranch_scc1 L_drain{c}_n")
        A(f"s_waitcnt vmcnt({8*c})")
        A("s_barrier")
        A("s_add_u32 s43, s43, s44")
        A("s_cmp_eq_u32 s43, s45")
        A("s_cselect_b32 s44, s41, 4")
        A(f"s_branch L_drain{c}")
        A(f"L_drain{c}_n:")
    if split:
        A("s_cmp_gt_u32 s47, 8")
        A("s_cbranch_scc1 L_last3")
        A("s_waitcnt vmcnt(0)")
        A("L_last3:")
        A(f"s_waitcnt vmcnt({8*split})")
        A("s_barrier")
    A("s_waitcnt vmcnt(0)")
    A("s_barrier")
    if stamps:
        A("s_branch L_stamp")
    A("s_endpgm")

    A("L_notloader:")
    A("s_cmp_lt_u32 s34, 5")
    A("s_cbranch_scc1 L_consumer")
    A("s_and_b32 s35, s33, 3")
    A("v_and_b32 v6, 31, v0")
    A("v_lshrrev_b32 v9, 5, v0")
    A("v_lshlrev_b32 v9, 4, v9")
    A("v_xor_b32 v9, v9, v6")
    A("v_lshlrev_b32 v12, 2, v6")
    A("v_lshlrev_b32 v13, 2, v9")
    A("v_add_u32 v15, s2, v6")
    A("v_and_b32 v15, 3, v15")
    A("v_cmp_eq_u32 vcc, 1, v15")
    A("v_mov_b32 v15, 0x100000")
    A("s_nop 0")
    A("v_cndmask_b32 v15, 0, v15, vcc")
    A("v_add_u32 v6, v6, v15")
    A("v_add_u32 v9, v9, v15")
    A("s_waitcnt lgkmcnt(0)")
    A("global_load_dword v7, v12, s[12:13]")
    A("global_load_dword v14, v13, s[12:13]")
    for base, p in ((16, 6),):
        A(f"s_mov_b32 s{base}, s{p}"); A(f"s_mov_b32 s{base+1}, s{p+1}")
        A(f"s_mov_b32 s{base+2}, {KBYTES}"); A(f"s_mov_b32 s{base+3}, 0x20000")
    A("v_lshrrev_b32 v8, 2, v0")
    A("v_lshlrev_b32 v8, 11, v8")
    A("v_and_b32 v10, 3, v0")
    A("v_lshl_add_u32 v8, v10, 6, v8          ; token*2048 + (l&3)*64")
    A("v_mov_b32 v19, 2048")
    A("v_mov_b32 v10, 0")
    A("s_getreg_b32 s48, hwreg(HW_REG_XCC_ID, 0, 3)")
    A(f"v_mov_b32 v32, {NBUF}")
    A("s_bitcmp1_b32 s48, 0")
    A(f"s_mov_b32 s49, {F(1.0+par)}")
    A(f"s_cselect_b32 s49, {F(1.0-par)}, s49")
    A("s_lshl_b32 s48, s48, 5")
    A("s_add_u32 s47, s48, s32")
    A("v_mov_b32 v17, s47")
    A("v_and_b32 v28, 7, v0")
    A("v_lshlrev_b32 v28, 2, v28")
    A("v_add_u32 v28, s48, v28")
    A("s_waitcnt vmcnt(0)")
    A("v_cmp_lt_i32 vcc, 0, v7")
    A("v_cmp_lt_i32 s[40:41], 0, v14")
    A("v_min_i32 v7, v7, v19")
    A("v_min_i32 v14, v14, v19")
    A("v_cndmask_b32 v7, v19, v7, vcc")
    A("v_cndmask_b32 v14, v19, v14, s[40:41]")
    A("v_lshl_add_u32 v11, v7, 5, v6")
    A("v_lshl_add_u32 v14, v14, 5, v9")
    A("v_add_u32_dpp v15, v7, v7 row_shr:1 row_mask:0xf bank_mask:0xf bound_ctrl:0")
    A("v_sub_u32 v12, v14, v11")
    for k in range(1, 16):
        A(f"v_sub_u32_dpp v{12 + (k&1)}, v14, v11 row_ror:{k} row_mask:0xf bank_mask:0xf")
        A(f"v_alignbit_b32 v10, v10, v{12 + ((k-1)&1)}, 31")
        if k in (2, 4, 6):
            A(f"v_add_u32_dpp v15, v15, v15 row_shr:{ {2:2,4:4,6:8}[k] } row_mask:0xf bank_mask:0xf bound_ctrl:0")
        if k == 8:
            A("v_add_u32_dpp v15, v15, v15 row_bcast:15 row_mask:0xa bank_mask:0xf")
    A("v_alignbit_b32 v10, v10, v13, 31")
    A("v_bcnt_u32_b32 v10, v10, 0")
    A("v_readlane_b32 s40, v15, 31")
    A("v_mov_b32 v12, v10")
    A("v_readlane_b32 s38, v7, s32")
    A("s_nop 0")
    A("v_permlane32_swap_b32 v10, v12")
    A("v_add_u32 v10, v10, v12                ; rank")
    A("v_cvt_f32_u32 v24, s40")
    A("v_readlane_b32 s41, v10, s32")
    A(f"v_mul_f32 v13, {F(pf_gain*pf_thr/1024)}, v24")
    A("v_cvt_f32_u32 v12, v7")
    A("v_rcp_f32 v24, v24")
    A("s_mul_i32 s36, s41, 86")
    A("s_lshr_b32 s36, s36, 8                 ; rank / 3")
    A("s_mul_i32 s44, s36, 3")
    A("s_sub_u32 s44, s41, s44                ; rank % 3")
    A("s_sub_u32 s41, 31, s36")
    A("s_cmp_eq_u32 s35, 1")
    A("s_cselect_b32 s36, 100, s44")
    A("v_cmp_eq_u32 vcc, s41, v10")
    A(f"v_mul_f32 v12, {F(pf_gain/32)}, v12")
    A("v_sub_f32 v12, v12, v13")
    A("v_cvt_i32_f32 v12, v12")
    A("v_lshrrev_b32 v13, 5, v7")
    A("v_min_i32 v12, v12, v13")
    A("s_ff1_i32_b32 s41, vcc_lo")
    A("s_and_b32 s41, s41, 31")
    A("v_readlane_b32 s45, v12, s41")
    A("v_readlane_b32 s55, v12, s32")
    A("v_readlane_b32 s56, v7, s41")
    A("s_lshl_b32 s43, s41, 9")
    A("v_add_u32 v1, s43, v1")
    A("global_load_dwordx2 v[2:3], v1, s[10:11]")
    A("v_cvt_f32_u32 v25, s38")
    A("s_add_u32 s37, s41, s2")
    A("s_and_b32 s37, s37, 7")
    A("s_lshl_b32 s37, s37, 8")
    A("s_add_u32 s36, s36, 1")
    A("s_sub_i32 s45, s45, s36")
    A("s_add_u32 s38, s38, 31")
    A("s_lshr_b32 s38, s38, 5                 ; tiles")
    A("s_add_u32 s42, s38, 3")
    A("s_lshr_b32 s58, s42, 2                 ; rounds")
    A("s_lshl_b32 s42, s58, 1")
    A("s_mov_b32 s59, s45")
    A("v_mul_f32 v25, v25, v24")
    if k7 or ka:
        A("s_cmp_eq_u32 s33, 7")
        A(f"s_mov_b32 s60, {F(ka*256*32)}")
        A(f"s_cselect_b32 s60, {F(k7*256*32)}, s60")
        A(f"v_subrev_f32 v27, {F(x7/32)}, v25")
        A("v_max_f32 v27, 0, v27")
    A(f"v_mov_b32 v26, {F(bias*256)}")
    if k7 or ka:
        A("v_fma_f32 v26, v27, s60, v26")
    A(f"v_mul_f32 v25, {F(alpha*256*32)}, v25")
    A("v_add_f32 v26, v26, v25")
    A("v_mul_f32 v26, s49, v26")
    A("s_max_i32 s55, s55, 0")
    A("s_cmp_eq_u32 s35, 1")
    A("s_cselect_b32 s55, s55, 0")
    A("v_cvt_u32_f32 v30, v26")
    A("v_cvt_f32_u32 v12, s38")
    A("v_cvt_f32_u32 v16, s55")
    A(f"v_mov_b32 v18, {F(hitw - 1.0)}")
    A("v_fma_f32 v12, v16, v18, v12")
    A("v_add_f32 v12, v12, v12")
    A("v_rcp_f32 v12, v12")
    A(f"s_mul_i32 s46, s42, {256 - int(pub_start*256)}")
    A("s_lshr_b32 s46, s46, 8")
    A(f"s_mul_i32 s50, s42, {256 - int(fb_start*256)}")
    A("s_lshr_b32 s50, s50, 8")
    A("v_mov_b32 v19, -1")
    A("s_mov_b32 s51, 0")
    A("s_sub_u32 s42, s42, 2")
    A("s_sub_u32 s56, s56, 1")
    A("s_lshr_b32 s56, s56, 5")
    A("s_and_b32 s57, s56, 3")
    A(f"s_min_u32 s57, s57, {pre-1}")
    A("s_sub_u32 s56, s56, s57")
    A("s_barrier")
    A("ds_write_b32 v32, v30")
    A("s_cmp_lt_i32 s45, 0")
    A("s_cbranch_scc1 L_pf_nosort")
    A("s_waitcnt vmcnt(0)")
    sort_pages(2, 3, 56, SBUF+768, 34, "p")
    A("v_lshlrev_b32 v1, 3, v0")
    A(f"v_add_u32 v1, {SBUF+768+256}, v1")
    A("ds_read_b64 v[2:3], v1")
    A("L_pf_nosort:")
    A("s_barrier")
    A("s_waitcnt vmcnt(0) lgkmcnt(0)")
    A("v_lshlrev_b32 v2, 15, v2")
    A("v_lshlrev_b32 v3, 15, v3")
    A("v_add_u32 v2, s37, v2")
    A("v_add_u32 v3, s37, v3")
    A("L_pf_loop:")
    A("s_cmp_eq_u32 s51, 0")
    A("s_cbranch_scc1 L_pf_nofb")
    A("s_cmp_eq_u32 s51, 2")
    A("s_cbranch_scc1 L_pf_w2")
    A("s_waitcnt vmcnt(0)")
    A("L_pf_w2:")
    A("s_waitcnt vmcnt(2)")
    A("v_msad_u8 v33, v19, v30, 0")
    A("v_sad_u8 v30, v30, 0, 0")
    A("v_lshl_add_u32 v30, v33, 16, v30")
    A("s_nop 1")
    for sh in (1, 2, 4):
        A(f"v_add_u32_dpp v30, v30, v30 row_ror:{sh} row_mask:0xf bank_mask:0xf")
        if sh != 4: A("s_nop 1")
    A("v_lshrrev_b32 v33, 16, v30")
    A("v_and_b32 v30, 0xffff, v30")
    A("v_add_u32 v30, v30, v33")
    A("v_cvt_f32_u32 v30, v30")
    A("v_cvt_f32_u32 v33, v33")
    A("v_rcp_f32 v30, v30")
    A("s_mov_b32 s51, 0")
    A("v_mul_f32 v30, v30, v33")
    if mid:
        A("v_cmp_lt_f32 vcc, 0.5, v30")
        A("v_subrev_f32 v33, 0.5, v30")
        A("s_nop 0")
        A("v_cndmask_b32 v29, v30, v33, vcc")
    else:
        A("v_mov_b32 v29, v30")
    A(f"v_max_f32 v33, {F(fb_dmin)}, v29")
    if ramp:
        A(f"v_mul_f32 v29, {F(-ramp)}, v29")
        A(f"v_add_f32 v29, {F(1.0 + ramp*ramp0)}, v29")
    A("v_rcp_f32 v33, v33")
    A("v_sub_f32 v30, v31, v30")
    A(f"v_mul_f32 v30, {F(fb_g)}, v30")
    A("v_fma_f32 v30, v30, v33, 1.0")
    A(f"v_max_f32 v30, {F(fb_lo)}, v30")
    A(f"v_min_f32 v30, {F(fb_hi)}, v30")
    A("v_mul_f32 v30, v30, v26")
    if ramp: A("v_mul_f32 v30, v30, v29")
    if hb:
        A("s_cmp_eq_u32 s42, s58")
        A("s_cselect_b32 s47, s59, s45")
        A("s_cmp_ge_i32 s47, 6")
        A(f"s_cselect_b32 s47, {F(1.0+hb)}, 1.0")
        A("v_mul_f32 v30, s47, v30")
    A("v_cvt_u32_f32 v30, v30")
    A("ds_write_b32 v32, v30")
    A("L_pf_nofb:")
    A("s_cmp_lg_u32 s42, s58")
    A("s_cbranch_scc1 L_pf_same")
    A("s_mov_b32 s16, s8")
    A("s_mov_b32 s17, s9")
    A("s_mov_b32 s45, s59")
    A("L_pf_same:")
    A("s_max_i32 s47, s45, 0")
    A("s_sub_i32 s54, s45, 3")
    A("s_max_i32 s49, s54, 0")
    A("v_readlane_b32 s52, v2, s47")
    A("v_readlane_b32 s53, v3, s47")
    A("v_readlane_b32 s56, v2, s49")
    A("v_readlane_b32 s57, v3, s49")
    A("s_cmp_ge_u32 s42, s58")
    A("s_cselect_b32 s47, s58, 0")
    A("s_cselect_b32 s49, 0.5, 0")
    A("s_sub_u32 s47, s42, s47")
    A("s_lshl_b32 s47, s47, 2")
    A("v_cvt_f32_u32 v15, s47")
    A(f"v_subrev_f32 v14, {F(pub_off)}, v15")
    A("v_min_f32 v13, v15, v16")
    A("v_fma_f32 v15, v13, v18, v15")
    A("v_min_f32 v13, v14, v16")
    A("v_fma_f32 v14, v13, v18, v14")
    A("v_fma_f32 v14, v14, v12, s49")
    A(f"v_mov_b32 v13, {F(255.5)}")
    A(f"v_mul_f32 v14, {F(-255.0)}, v14")
    A("v_add_f32 v14, v14, v13")
    A("v_min_f32 v14, v14, v13")
    A("v_cvt_u32_f32 v14, v14")
    A("s_cmp_gt_u32 s42, s46")
    A("s_cbranch_scc1 L_pf_nopub")
    A("s_mov_b64 exec, 1")
    A("global_store_byte v17, v14, s[30:31]")
    A("s_mov_b64 exec, -1")
    A("s_cmp_gt_u32 s42, s50")
    A("s_cbranch_scc1 L_pf_nopub")
    A("s_waitcnt lgkmcnt(0)")
    A("global_load_dword v30, v28, s[30:31] nt")
    A("v_fma_f32 v31, v15, v12, s49")
    A("s_mov_b32 s51, 1")
    A("L_pf_nopub:")
    A("s_cmp_lt_i32 s45, 0")
    A("s_cbranch_scc1 L_pf_nov")
    A("s_lshl_b32 s51, s51, 1")
    A("buffer_load_dword v20, v8, s[16:19], s52 offen")
    A("buffer_load_dword v21, v8, s[16:19], s53 offen")
    A("s_sub_i32 s45, s45, 6")
    A("s_cmp_lt_i32 s54, 0")
    A("s_cbranch_scc1 L_pf_nov")
    A("s_waitcnt vmcnt(0)")
    A("buffer_load_dword v22, v8, s[16:19], s56 offen")
    A("buffer_load_dword v23, v8, s[16:19], s57 offen")
    A("L_pf_nov:")
    A("s_cmp_le_i32 s42, 1")
    A("s_cbranch_scc1 L_pf_exit")
    A("s_sub_u32 s42, s42, 1")
    A("s_barrier")
    A("s_branch L_pf_loop")
    A("L_pf_exit:")
    A("s_endpgm")

    P0, S0, O0, Q0, F0, B0, X0, KA, PST = 40, 48, 48, 64, 96, 64, 40, 16, 128
    VA0, VA1, vM, vL, vMC = 24, 25, 28, 29, 33
    vPW, vPR, vMW, vMR = 4, 5, 6, 7
    A("; ================================================================ consumers")
    A("L_consumer:")
    A("s_sub_u32 s34, s34, 1                  ; cw")
    A("v_and_b32 v1, 31, v0")
    A("v_lshrrev_b32 v2, 5, v0                ; hf")
    A("s_lshl_b32 s35, s32, 16")
    A("s_lshl_b32 s36, s33, 13")
    A("s_add_u32 s35, s35, s36")
    A("s_lshl_b32 s36, s32, 2")
    A("s_waitcnt lgkmcnt(0)")
    A("s_load_dword s37, s[12:13], s36")
    A("s_lshl_b32 s46, s34, 13                ; cw*8192")
    A("v_and_b32 v8, 3, v0")
    A("v_bfe_u32 v9, v0, 2, 2")
    A("v_lshl_add_u32 v10, v8, 2, v9")
    A("v_xor_b32 v10, v10, v2")
    A("v_lshlrev_b32 v10, 4, v10")
    A("v_lshl_add_u32 v10, v1, 8, v10")
    A(f"v_add_u32 v{KA}, s46, v10")
    A(f"v_add_u32 v{S0}, {QBUF}, v10")
    for kk in range(1, 8):
        A(f"v_xor_b32 v{S0+kk}, {32*kk}, v{S0}")
    for kk in range(1, 8):
        A(f"v_xor_b32 v{KA+kk}, {32*kk}, v{KA}")
    A("v_lshl_add_u32 v10, v2, 2, v9")
    A("v_lshlrev_b32 v10, 8, v10")
    A("v_xor_b32 v11, s34, v9")
    A("v_lshl_add_u32 v10, v11, 6, v10")
    A("v_bfe_u32 v11, v0, 4, 1")
    A("v_bfe_u32 v12, v0, 1, 1")
    A("v_lshl_add_u32 v11, v11, 1, v12")
    A("v_xor_b32 v11, v11, v2")
    A("v_lshl_add_u32 v10, v11, 4, v10")
    A("v_and_b32 v11, 1, v0")
    A(f"v_lshl_add_u32 v{VA0}, v11, 3, v10")
    A(f"v_xor_b32 v{VA1}, 32, v{VA0}")
    A("v_lshlrev_b32 v10, 4, v0")
    A(f"v_add_u32 v{vPR}, {PBUF}, v10")
    A("s_lshl_b32 s47, s34, 11")
    A(f"v_add_u32 v{vPW}, s47, v{vPR}")
    A("v_lshlrev_b32 v11, 5, v1")
    A(f"v_add_u32 v{vMR}, {MBUF}, v11")
    A("s_lshl_b32 s47, s34, 3")
    A(f"v_lshl_add_u32 v{vMW}, v2, 2, v{vMR}")
    A(f"v_add_u32 v{vMW}, s47, v{vMW}")
    A("v_lshlrev_b32 v8, 2, v1")
    A(f"v_add_u32 v8, {ABUF}, v8")
    A("v_add_u32 v9, 128, v8")
    for i in range(4):
        A(f"v_mov_b32 v{P0+i}, 0")
    A(f"v_mov_b32 v{vM}, {F(-1e30)}")
    A(f"v_mov_b32 v{vMC}, {F(-1e30)}")
    A(f"v_mov_b32 v{vL}, 0")
    A("v_mov_b32 v15, 0xff800000")
    A("s_lshl_b32 s47, s34, 6")
    A("s_add_u32 s47, s47, s35")
    A("v_lshrrev_b32 v36, 2, v0")
    A("v_and_b32 v37, 3, v0")
    A("v_lshlrev_b32 v3, 8, v36")
    A("v_lshl_add_u32 v3, v37, 4, v3")
    A("v_add_u32 v3, s47, v3")
    A("s_lshl_b32 s47, s34, 11")
    A(f"s_add_u32 s47, s47, {QBUF}")
    A("v_bfe_u32 v38, v0, 3, 2")
    A("v_xor_b32 v37, v37, v38")
    A("v_lshlrev_b32 v37, 4, v37")
    A("v_lshl_add_u32 v37, v36, 6, v37")
    A("v_add_u32 v13, s47, v37")
    A("v_bfe_u32 v38, v0, 1, 2")
    A("v_lshlrev_b32 v38, 4, v38")
    A("v_lshl_add_u32 v38, v1, 6, v38")
    A("v_lshl_add_u32 v38, v2, 3, v38")
    A("v_add_u32 v36, s47, v38")
    A("v_xor_b32 v37, 16, v36")
    A("v_xor_b32 v38, 32, v36")
    A("v_xor_b32 v12, 48, v36")
    A("s_waitcnt lgkmcnt(0)")
    A(f"s_mov_b32 s48, {F(128**-0.5*math.log2(math.e))}             ; D^-0.5 * log2(e)")
    A("s_cmp_gt_i32 s37, 0")
    A("s_cselect_b32 s48, s48, 0")
    A("s_cselect_b32 s37, s37, 2048")
    A("s_min_i32 s37, s37, 2048")
    A("s_add_u32 s38, s37, 31")
    A("s_lshr_b32 s38, s38, 5                 ; tiles")
    A("s_sub_u32 s40, s38, 1")
    A("s_and_b32 s41, s40, 3")
    A("s_add_u32 s41, s41, 1                  ; m")
    A("s_add_u32 s42, s38, 3")
    A("s_lshr_b32 s42, s42, 2                 ; rounds")
    A("s_lshl_b32 s40, s40, 5")
    A("s_sub_u32 s40, s37, s40")
    A("s_cmp_eq_u32 s34, 0")
    A("s_cselect_b32 s40, s40, 64")
    A("s_cmp_lt_u32 s34, s41")
    A("s_cselect_b32 s40, s40, 0")
    A("v_lshlrev_b32 v14, 2, v2")
    A("v_sub_u32 v14, s40, v14")
    A("s_cbranch_scc1 L_active")
    A("s_cmp_gt_u32 s42, 4")
    A("s_cbranch_scc1 L_active")
    A("s_max_u32 s47, s42, 2")
    A("s_and_b32 s47, s47, 3")
    A("s_lshl_b32 s47, s47, 15")
    A("s_add_u32 s47, s47, s46")
    A("v_add_u32 v11, s47, v10")
    for i in range(8):
        A(f"ds_write_b128 v11, v[{P0}:{P0+3}] offset:{1024*i}")
    A("L_active:")
    A("s_mov_b32 s43, 0                       ; round")
    A("s_mov_b32 s44, 0x8000")
    A("s_mov_b32 s49, 0")
    A("s_waitcnt vmcnt(0) lgkmcnt(0)")
    A("s_barrier")
    if stamps:
        A("s_memrealtime s[62:63]")
        A("s_waitcnt lgkmcnt(0)")
    for kk in range(8):
        A(f"ds_read_b128 v[{Q0+4*kk}:{Q0+4*kk+3}], v{S0+kk}")
    def rdP(i): return f"ds_read_b128 v[{B0+4*i}:{B0+4*i+3}], v{vPR} offset:{2048*(i>>1) + 1024*(i&1)}"
    def rdV(i):
        r = F0 + 4*i
        return [f"ds_read_b64_tr_b16 v[{r}:{r+1}], v26 offset:{8192*(i>>1) + 4096*(i&1)}",
                f"ds_read_b64_tr_b16 v[{r+2}:{r+3}], v27 offset:{8192*(i>>1) + 4096*(i&1) + 2048}"]
    def rdX(): return [f"ds_read_b128 v[{X0}:{X0+3}], v{vMR}", f"ds_read_b128 v[{X0+4}:{X0+7}], v{vMR} offset:16"]
    def mm(i):
        r = F0 + 4*i
        return f"v_mfma_f32_32x32x16_bf16 v[{O0}:{O0+15}], v[{r}:{r+3}], v[{B0+4*i}:{B0+4*i+3}], v[{O0}:{O0+15}]"
    def vaddr():
        A("s_and_b32 s47, s45, 3")
        A("s_lshl_b32 s47, s47, 15")
        A("s_add_u32 s45, s45, 1")
        A(f"v_add_u32 v26, s47, v{VA0}")
        A(f"v_add_u32 v27, s47, v{VA1}")
    def fetchP():
        A("s_set_gpr_idx_on s50, gpr_idx(SRC0)")
        A("s_nop 0")
        for i in range(8): A(f"v_mov_b32 v{P0+i}, v{PST+i}")
        A("s_set_gpr_idx_off")
        A("s_add_u32 s50, s50, 8")
    def putP():
        return [f"ds_write_b128 v{vPW}, v[{P0}:{P0+3}]", f"ds_write_b128 v{vPW}, v[{P0+4}:{P0+7}] offset:1024"]
    A("s_mov_b32 s50, 0")
    A("L_K:")
    for x in rdX(): A(x)
    for kk in range(8):
        A(f"ds_read_b128 v[{F0+4*kk}:{F0+4*kk+3}], v{KA+kk}")
    A("s_cmp_eq_u32 s43, 0")
    A("s_cbranch_scc1 L_X")
    A(f"v_xor_b32 v{vMR}, 0x400, v{vMR}")
    A("s_waitcnt lgkmcnt(8)")
    A(f"v_max3_f32 v30, v{X0}, v{X0+1}, v{X0+2}")
    A(f"v_max3_f32 v31, v{X0+3}, v{X0+4}, v{X0+5}")
    A(f"v_max3_f32 v30, v30, v{X0+6}, v{X0+7}")
    A(f"v_max3_f32 v{vM}, v30, v31, v{vM}")
    A(f"v_mul_f32 v32, s48, v{vM}")
    A(f"v_sub_f32 v31, v{vMC}, v32")
    A(f"v_mov_b32 v{vMC}, v32")
    A("v_exp_f32 v34, v31")
    for v in range(16):
        A(f"v_fma_f32 v{S0+v}, v{S0+v}, s48, -v32")
    A("ds_write_b32 v8, v34")
    A(f"v_mul_f32 v{vL}, v{vL}, v34")
    for v in range(16):
        A(f"v_exp_f32 v{S0+v}, v{S0+v}")
    A("v_add_u32 v8, 128, v8")
    for i in range(8):
        A(f"v_cvt_pk_bf16_f32 v{P0+i}, v{S0+2*i}, v{S0+2*i+1}")
    A(f"v_add_f32 v30, v{S0}, v{S0+1}")
    A(f"v_add_f32 v31, v{S0+2}, v{S0+3}")
    for v in range(4, 16, 2):
        A(f"v_add_f32 v30, v30, v{S0+v}")
        A(f"v_add_f32 v31, v31, v{S0+v+1}")
    A("v_add_f32 v30, v30, v31")
    A(f"v_add_f32 v{vL}, v{vL}, v30")
    A("s_set_gpr_idx_on s49, gpr_idx(DST)")
    A("s_nop 0")
    for i in range(8): A(f"v_mov_b32 v{PST+i}, v{P0+i}")
    A("s_set_gpr_idx_off")
    A("s_add_u32 s49, s49, 8")
    A("s_cmp_eq_u32 s43, s42")
    A("s_cbranch_scc1 L_V0")
    A("L_X:")
    A("s_waitcnt lgkmcnt(0)")
    for kk in range(8):
        c = "0" if kk == 0 else f"v[{S0}:{S0+15}]"
        A(f"v_mfma_f32_32x32x16_bf16 v[{S0}:{S0+15}], v[{F0+4*kk}:{F0+4*kk+3}], v[{Q0+4*kk}:{Q0+4*kk+3}], {c}")
    for i in range(8): A(f"v_xor_b32 v{KA+i}, s44, v{KA+i}")
    A("s_xor_b32 s44, s44, 0x10000")
    A("s_add_u32 s43, s43, 1")
    A("s_cmp_lg_u32 s43, 1")
    A("s_cbranch_scc1 L_nomask")
    A("s_nop 0")
    for v in range(16):
        A(f"v_cmp_lt_i32 vcc, {8*(v>>2)+(v&3)}, v14")
        A("s_nop 1")
        A(f"v_cndmask_b32 v{S0+v}, v15, v{S0+v}, vcc")
    A("s_branch L_max")
    A("L_nomask:")
    A("s_cmp_lg_u32 s43, s42")
    A("s_cbranch_scc1 L_max")
    fetchP()
    for x in putP(): A(x)
    A(f"v_xor_b32 v{vPW}, 0x2000, v{vPW}")
    A("L_max:")
    A(f"v_max3_f32 v30, v{S0}, v{S0+1}, v{S0+2}")
    A(f"v_max3_f32 v31, v{S0+3}, v{S0+4}, v{S0+5}")
    A(f"v_max3_f32 v30, v30, v{S0+6}, v{S0+7}")
    A(f"v_max3_f32 v31, v31, v{S0+8}, v{S0+9}")
    A(f"v_max3_f32 v30, v30, v{S0+10}, v{S0+11}")
    A(f"v_max3_f32 v31, v31, v{S0+12}, v{S0+13}")
    A(f"v_max3_f32 v30, v30, v{S0+14}, v{S0+15}")
    A("v_max_f32 v30, v30, v31")
    A(f"ds_write_b32 v{vMW}, v30")
    A(f"v_xor_b32 v{vMW}, 0x400, v{vMW}")
    A("s_waitcnt lgkmcnt(0)")
    A("s_barrier")
    A("s_branch L_K")
    A("L_V0:")
    A(f"v_or_b32 v{vMW}, 0x400, v{vMW}")
    A(f"v_or_b32 v{vMR}, 0x400, v{vMR}")
    A(f"ds_write_b32 v{vMW}, v{vL} offset:1024")
    A(f"v_add_u32 v{vMR}, 1024, v{vMR}")
    for i in range(16):
        A(f"v_mov_b32 v{O0+i}, 0")
    A("s_max_u32 s45, s42, 2")
    vaddr()
    A("s_sub_u32 s42, s42, 1")
    A("s_cmp_lg_u32 s42, 0")
    A("s_waitcnt lgkmcnt(0)")
    A("s_cbranch_scc1 L_V")
    for x in putP(): A(x)
    A("s_waitcnt lgkmcnt(0)")
    A("s_barrier")
    A("s_branch L_last")
    A("L_V:")
    st = dict(n=0, done={})
    def emit_lds(x, tag=None):
        A(x); st["n"] += 1
        if tag is not None: st["done"][tag] = st["n"]
    AH = 4
    for i in range(AH):
        emit_lds(rdP(i)); v = rdV(i); emit_lds(v[0]); emit_lds(v[1], i)
    fetchP()
    for i in range(8):
        A(f"s_waitcnt lgkmcnt({st['n'] - st['done'][i]})")
        A(mm(i))
        if i + AH < 8:
            emit_lds(rdP(i+AH)); v = rdV(i+AH); emit_lds(v[0]); emit_lds(v[1], i+AH)
        if i == 4:
            emit_lds("ds_read_b32 v34, v9")
            for x in putP(): emit_lds(x)
    A(f"v_xor_b32 v{vPR}, 0x2000, v{vPR}")
    A(f"v_xor_b32 v{vPW}, 0x2000, v{vPW}")
    A("v_add_u32 v9, 128, v9")
    vaddr()
    A("s_sub_u32 s42, s42, 1")
    A("s_cmp_lg_u32 s42, 0")
    A("s_waitcnt lgkmcnt(0)")
    A("s_nop 0")
    for i in range(0, 16, 2):
        A(f"v_pk_mul_f32 v[{O0+i}:{O0+i+1}], v[{O0+i}:{O0+i+1}], v[34:35] op_sel_hi:[1,0]")
    A("s_barrier")
    A("s_cbranch_scc1 L_V")
    A("L_last:")
    NF = 8 - 2*split
    st["n"] = 0; st["done"] = {}
    for i in range(AH):
        emit_lds(rdP(i)); v = rdV(i); emit_lds(v[0]); emit_lds(v[1], i)
    extra = False
    for i in range(NF):
        A(f"s_waitcnt lgkmcnt({st['n'] - st['done'][i]})")
        A(mm(i))
        if i + AH < NF:
            emit_lds(rdP(i+AH)); v = rdV(i+AH); emit_lds(v[0]); emit_lds(v[1], i+AH)
        elif not extra:
            for k in range(NF, 8): emit_lds(rdP(k))
            for x in rdX(): emit_lds(x)
            extra = True
    A("s_waitcnt lgkmcnt(0)")
    A(f"v_add_f32 v30, v{X0}, v{X0+1}")
    A(f"v_add_f32 v31, v{X0+2}, v{X0+3}")
    A(f"v_add_f32 v32, v{X0+4}, v{X0+5}")
    A(f"v_add_f32 v33, v{X0+6}, v{X0+7}")
    A("v_add_f32 v30, v30, v31")
    A("v_add_f32 v32, v32, v33")
    A("v_add_f32 v30, v30, v32")
    A("v_rcp_f32 v34, v30")
    A("v_add_u32 v31, 4096, v3")
    if split: A("s_barrier")
    for k in range(NF, 8):
        for x in rdV(k): A(x)
    for k in range(NF, 8):
        A(f"s_waitcnt lgkmcnt({2*(7-k)})")
        A(mm(k))
    A("s_nop 11" if split else "s_nop 1")
    if stamps:
        A("s_memrealtime s[64:65]")
    for i in range(4):
        for k in (0, 2):
            r = O0 + 4*i + k
            A(f"v_pk_mul_f32 v[{r}:{r+1}], v[{r}:{r+1}], v[34:35] op_sel_hi:[1,0]")
        A(f"v_cvt_pk_bf16_f32 v{P0+2*i}, v{O0+4*i}, v{O0+4*i+1}")
        A(f"v_cvt_pk_bf16_f32 v{P0+2*i+1}, v{O0+4*i+2}, v{O0+4*i+3}")
        A(f"ds_write_b64 v{(36,37,38,12)[i]}, v[{P0+2*i}:{P0+2*i+1}]")
    A(f"ds_read_b128 v[{F0}:{F0+3}], v13")
    A(f"ds_read_b128 v[{F0+4}:{F0+7}], v13 offset:1024")
    A("s_waitcnt lgkmcnt(1)")
    A(f"global_store_dwordx4 v3, v[{F0}:{F0+3}], s[14:15]")
    A("s_waitcnt lgkmcnt(0)")
    A(f"global_store_dwordx4 v31, v[{F0+4}:{F0+7}], s[14:15]")
    if stamps:
        A("s_add_u32 s34, s34, 1")
        A("s_waitcnt vmcnt(0)")
        A("L_stamp:")
        A("s_memrealtime s[66:67]")
        A("s_mul_i32 s35, s2, 5"); A("s_add_u32 s35, s35, s34"); A("s_lshl_b32 s35, s35, 5")
        A("s_waitcnt lgkmcnt(0)")
        A("v_mov_b32 v12, s60"); A("v_mov_b32 v13, s61"); A("v_mov_b32 v14, s66"); A("v_mov_b32 v15, s67")
        A("v_mov_b32 v20, s62"); A("v_mov_b32 v21, s63"); A("v_mov_b32 v22, s64"); A("v_mov_b32 v23, s65")
        A("v_mov_b32 v16, s35")
        A("v_cmp_eq_u32 vcc, 0, v0")
        A("s_and_saveexec_b64 s[46:47], vcc")
        A("global_store_dwordx4 v16, v[12:15], s[68:69]")
        A("global_store_dwordx4 v16, v[20:23], s[68:69] offset:16")
        A("s_waitcnt vmcnt(0)")
    A("L_end:")
    A("s_endpgm")
    A('.section .rodata,"a"')
    A(".p2align 6")
    A(f".amdhsa_kernel {NAME}_kernel")
    A("  .amdhsa_next_free_vgpr 256")
    A("  .amdhsa_next_free_sgpr 72")
    A("  .amdhsa_accum_offset 256")
    A("  .amdhsa_group_segment_fixed_size 0")
    A("  .amdhsa_kernarg_size 64")
    A("  .amdhsa_user_sgpr_count 2")
    A("  .amdhsa_user_sgpr_kernarg_segment_ptr 1")
    A("  .amdhsa_system_sgpr_workgroup_id_x 1")
    A(".end_amdhsa_kernel")
    return "\n".join(o) + "\n"

if __name__ == "__main__":
    out = sys.argv[1]
    kw = {}
    for a in sys.argv[2:]:
        k, v = a.split("=", 1)
        try: v = json.loads(v)
        except Exception: pass
        kw[k] = v
    open(out, "w").write(gen(**kw))
```
